```python
import torch

def _softmax(x, axis=-1):
    return torch.softmax(x, dim=axis)
def _gelu(x):
    return torch.nn.functional.gelu(x, approximate="tanh")
def _silu(x):
    return torch.nn.functional.silu(x)
def _sigmoid(x):
    return torch.sigmoid(x)
def _layernorm(x, axis=-1, eps=1e-5):
    m = x.mean(dim=axis, keepdim=True)
    v = x.var(dim=axis, keepdim=True, unbiased=False)
    return (x - m) / torch.sqrt(v + eps)
def _scatter_add(tgt, idx, src, axis=0):
    return tgt.clone().index_add_(axis, idx, src)
def _segment_sum(src, seg, n):
    out = torch.zeros((n,) + src.shape[1:], dtype=src.dtype)
    return out.index_add_(0, seg, src)
def _pad(x, pw):
    flat = tuple(v for pair in reversed(pw) for v in pair)
    return torch.nn.functional.pad(x, flat)

kernel_name = 'gated_mix__sliding_block_cached__dense_activation_gelu__decode'

def setup_inputs():

    _w = (lambda a: (lambda t: t.to(torch.bfloat16) if t.is_floating_point() else t)(torch.as_tensor(a)))
    def _A_setup():
        B, Sq, D = 1, 1, 576
        Hq, Hkv, Sk, Dh = 32, 16, 65536, 128
        assert Hq % Hkv == 0, (Hq, Hkv)
        return {
            "x": _w((lambda *s: torch.randn(*s, dtype=torch.bfloat16) * 0.05)(B, Sq, D)),
            "k_cache": _w((lambda *s: torch.randn(*s, dtype=torch.bfloat16) * 3.2)(B, Hkv, Sk, Dh)),
            "v_cache": _w((lambda *s: torch.randn(*s, dtype=torch.bfloat16) * 0.1)(B, Hkv, Sk, Dh)),
            "wq": _w((lambda *s: torch.randn(*s, dtype=torch.bfloat16) * 3.2)(D, Hq * Dh) * (D ** -0.5)),
            "wo": _w((lambda *s: torch.randn(*s, dtype=torch.bfloat16) * 0.1)(Hq * Dh, D) * ((Hq * Dh) ** -0.5)),
        }
    _A_in = _A_setup()

    def _B_setup():
        B, S, D, F = 1, 1, 576, 4608
        return {
            "x": _w((lambda *s: torch.randn(*s, dtype=torch.bfloat16) * 0.05)(B, S, D)),
            "w1": _w((lambda *s: torch.randn(*s, dtype=torch.bfloat16) * 0.1)(D, F) * (D ** -0.5)),
            "b1": _w((lambda *s: torch.randn(*s, dtype=torch.bfloat16) * 0.1)(F) * 0.01),
            "w2": _w((lambda *s: torch.randn(*s, dtype=torch.bfloat16) * 0.1)(F, D) * (F ** -0.5)),
            "b2": _w((lambda *s: torch.randn(*s, dtype=torch.bfloat16) * 0.05)(D) * 0.01),
        }
    _B_in = _B_setup()

    return {
        "A_x": _A_in["x"],
        "A_k_cache": _A_in["k_cache"],
        "A_v_cache": _A_in["v_cache"],
        "A_wq": _A_in["wq"],
        "A_wo": _A_in["wo"],
        "B_x": _B_in["x"],
        "B_w1": _B_in["w1"],
        "B_b1": _B_in["b1"],
        "B_w2": _B_in["w2"],
        "B_b2": _B_in["b2"],
        "gate_w": _w((lambda *s: torch.randn(*s, dtype=torch.bfloat16) * 0.05)(576) * 16.0),
    }

def reference(A_x, A_k_cache, A_v_cache, A_wq, A_wo, B_x, B_w1, B_b1, B_w2, B_b2, gate_w):
    def _A_ref(x, k_cache, v_cache, wq, wo):
        B, Sq, D = x.shape
        Hq, Dh = 32, 128
        Hkv, Sk = k_cache.shape[1], k_cache.shape[2]
        W = min(4096, max(256, Sk // 4))
        rep = Hq // Hkv
        q = (lambda x, *d: x.permute(*d))((x @ wq).reshape(B, Sq, Hq, Dh), 0, 2, 1, 3)
        k = (lambda x, n, axis: torch.repeat_interleave(x, n, dim=axis))(k_cache[:, :, Sk - W:, :], rep, axis=1)
        v = (lambda x, n, axis: torch.repeat_interleave(x, n, dim=axis))(v_cache[:, :, Sk - W:, :], rep, axis=1)
        scores = torch.einsum("bhqd,bhkd->bhqk", q, k) * (Dh ** -0.5)
        p = _softmax(scores, axis=-1)
        o = torch.einsum("bhqk,bhkd->bhqd", p, v)
        return (lambda x, *d: x.permute(*d))(o, 0, 2, 1, 3).reshape(B, Sq, Hq * Dh) @ wo

    def _B_ref(x, w1, b1, w2, b2):
        h = torch.einsum("bsd,df->bsf", x, w1) + b1
        h = _gelu(h)
        return torch.einsum("bsf,fd->bsd", h, w2) + b2

    x = A_x
    g = _sigmoid((x * gate_w).sum(-1, keepdims=True))
    a = _A_ref(x, A_k_cache, A_v_cache, A_wq, A_wo)
    b = _B_ref(x, B_w1, B_b1, B_w2, B_b2)
    return g * a + (1 - g) * b
```

```python
import re

def _regs(tok):
    tok = tok.strip()
    tok = re.sub(r'^-', '', tok)
    m = re.match(r'^(abs|neg)\((.*)\)$', tok)
    if m: tok = m.group(2)
    tok = tok.strip('|')
    m = re.match(r'^([vsa])\[(\d+):(\d+)\]$', tok)
    if m:
        return {(m.group(1), i) for i in range(int(m.group(2)), int(m.group(3)) + 1)}
    m = re.match(r'^([vsa])(\d+)$', tok)
    if m:
        return {(m.group(1), int(m.group(2)))}
    if tok in ('vcc', 'vcc_lo', 'vcc_hi'): return {('x', 'vcc')}
    if tok in ('exec', 'exec_lo', 'exec_hi'): return {('x', 'exec')}
    if tok == 'm0': return {('x', 'm0')}
    return set()

TRANS = ('v_exp_', 'v_log_', 'v_rcp_', 'v_rsq_', 'v_sqrt_', 'v_sin_', 'v_cos_')

class Ins:
    def __init__(self, text):
        self.text = text
        t = text.split(';')[0].strip()
        parts = t.split(None, 1)
        self.op = parts[0]
        rest = parts[1] if len(parts) > 1 else ''
        ops = []; cur = ''; depth = 0
        for ch in rest:
            if ch == '[': depth += 1
            if ch == ']': depth -= 1
            if ch == ',' and depth == 0:
                ops.append(cur.strip()); cur = ''
            else:
                cur += ch
        if cur.strip(): ops.append(cur.strip())
        mods = ''
        if ops:
            last = ops[-1].split(None, 1)
            ops[-1] = last[0]
            if len(last) > 1: mods = last[1]
        self.ops = ops; self.mods = mods
        op = self.op
        self.mfma = op.startswith('v_mfma')
        self.dl = op.startswith('v_dot')
        self.valu = op.startswith('v_') and not self.mfma
        self.trans = op.startswith(TRANS)
        self.dpp = self.valu and ('quad_perm' in mods or 'row_' in mods or 'wave_' in mods)
        self.perml = op.startswith('v_permlane')
        self.rdlane = op.startswith('v_readfirstlane') or op.startswith('v_readlane')
        self.wrlane = op.startswith('v_writelane')
        self.vmem = op.startswith(('global_', 'buffer_', 'flat_'))
        self.ds = op.startswith('ds_')
        self.salu = op.startswith('s_')
        self.w = set(); self.r = set(); self.srcc = set()
        R = [_regs(o) for o in ops]
        if self.mfma:
            self.w = R[0]; self.r = R[1] | R[2] | R[3]; self.srcc = R[3]; self.ab = R[1] | R[2]
            self.passes = 4 if '16x16' in op else 8
        elif self.valu:
            if self.perml and 'swap' in op:
                self.w = R[0] | R[1]; self.r = R[0] | R[1]
            elif op.startswith('v_cmpx'):
                self.w = R[0] | {('x', 'exec')}
                for x in R[1:]: self.r |= x
            elif re.match(r'v_(add|sub|subrev|addc|subb)_co', op):
                self.w = R[0] | R[1]
                for x in R[2:]: self.r |= x
            else:
                self.w = R[0]
                for x in R[1:]: self.r |= x
                if op.startswith(('v_fmac', 'v_dot2c', 'v_mac', 'v_pk_fmac')) or self.dpp or self.wrlane:
                    self.r |= R[0]
                if op.startswith('v_cndmask') and len(ops) == 3:
                    self.r |= {('x', 'vcc')}
        elif self.vmem or self.ds:
            isload = ('load' in op or 'read' in op or 'permute' in op or 'swizzle' in op or '_rtn' in op
                      or ('atomic' in op and 'sc0' in mods))
            if isload and 'lds' not in mods.split() and '_lds_' not in op:
                self.w = R[0]
                for x in R[1:]: self.r |= x
            else:
                for x in R: self.r |= x
            self.wide_store = self.vmem and 'store' in op and ('x3' in op or 'x4' in op)
            if self.wide_store:
                self.sdata = R[1] if op.startswith('global_') else R[0]
        elif self.salu:
            if op.startswith(('s_cmp', 's_cbranch', 's_branch', 's_waitcnt', 's_nop', 's_sleep', 's_barrier', 's_endpgm', 's_setprio', 's_bitcmp', 's_setpc')):
                for x in R: self.r |= x
            else:
                if R: self.w = set(R[0])
                for x in R[1:]: self.r |= x
                if 'saveexec' in op: self.w |= {('x', 'exec')}
        self.states = 1
        if op == 's_nop':
            self.states = int(ops[0], 0) + 1

def need(p, c):
    n = 0
    vw = {x for x in p.w if x[0] in 'va'}
    sw = {x for x in p.w if x[0] == 's' or x == ('x', 'vcc')}
    cvr = {x for x in c.r if x[0] in 'va'}
    cvw = {x for x in c.w if x[0] in 'va'}
    if p.valu:
        if c.mfma and vw & c.r: n = max(n, 2)
        if c.dpp and vw & cvr: n = max(n, 2)
        if c.perml and vw & cvr: n = max(n, 2)
        if c.rdlane and vw & cvr: n = max(n, 1)
        if p.trans and c.valu and not c.trans and vw & cvr: n = max(n, 1)
        if p.trans and c.mfma and vw & c.r: n = max(n, 2)
        if sw & c.r:
            if c.valu or c.mfma: n = max(n, 2)
            if c.rdlane or c.wrlane: n = max(n, 4)
            if c.vmem: n = max(n, 5)
        if ('x', 'exec') in p.w:
            if c.dpp: n = max(n, 5)
            if c.rdlane or c.wrlane or c.perml or c.mfma: n = max(n, 4)
        if p.dl:
            if vw & (cvr | cvw):
                if c.op == p.op and not (vw & (set().union(*[_regs(o) for o in c.ops[1:3]]))):
                    pass
                else:
                    n = max(n, 3)
        if ('sdwa' in p.op or 'op_sel' in p.mods) and c.valu and vw & (cvr | cvw): n = max(n, 1)
    if p.mfma:
        k = {4: (6, 8, 3), 8: (10, 12, 7)}[p.passes]
        if c.mfma:
            if p.w & c.ab: n = max(n, k[1])
            if p.w & c.srcc and p.w != c.srcc: n = max(n, k[0])
            if p.w & c.w and p.w != c.srcc: n = max(n, k[0])
        elif c.valu or c.vmem or c.ds:
            if p.w & (cvr | cvw): n = max(n, k[1])
            if c.valu and p.srcc & cvw: n = max(n, k[2])
    if p.vmem and getattr(p, 'wide_store', False):
        if p.sdata & cvw: n = max(n, 2)
    if p.salu and ('x', 'm0') in p.w and (c.vmem and 'lds' in c.text): n = max(n, 1)
    return n

class Asm:
    def __init__(self):
        self.lines = []
        self.hist = []
        self.npad = 0
    def raw(self, s):
        self.lines.append(s)
    def label(self, name):
        self.lines.append(name + ':')
    def c(self, s):
        self.lines.append('    ; ' + s)
    def __call__(self, text):
        for t in text.split('\n'):
            t = t.strip()
            if not t or t.startswith(';'):
                continue
            if t.endswith(':'):
                self.label(t[:-1]); continue
            ins = Ins(t)
            dist = 0; pad = 0
            for p in reversed(self.hist[-24:]):
                nd = need(p, ins)
                if nd > dist: pad = max(pad, nd - dist)
                dist += p.states
                if dist >= 20: break
            while pad > 0:
                k = min(pad, 16)
                nop = Ins(f's_nop {k-1}')
                self.lines.append(f'    s_nop {k-1}')
                self.hist.append(nop); pad -= k; self.npad += 1
            self.lines.append('    ' + t)
            self.hist.append(ins)
            if ins.op in ('s_branch', 's_endpgm', 's_setpc_b64'):
                self.hist = []
    def text(self):
        return '\n'.join(self.lines) + '\n'
```

```python
import sys, math
from asmlib import Asm
KNAME = "gated_mix__sliding_block_cached__dense_activation_gelu__decode_kernel"

WS_E = 0
WS_QP = 0x1000
WS_ST = 0x12000
WS_OP = 0x20000
WS_FP = 0x80000
WS_DBG = 0x200000
L_CISS, L_FQ, L_CDONE, L_CH, L_FO = 0, 4, 8, 12, 16
L_Q = 64
L_SW = 640
L_HP = 768
L_OB = 1152
L_OW = 2048
LDS_BYTES = 10240
NWAVES = 12
import struct
def f2u(f): return struct.unpack('<I', struct.pack('<f', f))[0]
CSC = (128 ** -0.5) * math.log2(math.e)

def gen(stamps=False, nt=" nt"):
    a = Asm()
    hdr = open('gated_mix__sliding_block_cached__dense_activation_gelu__decode.s.ref').read().split('\n')
    for l in hdr:
        if l.startswith('; @launch'): break
        a.raw(l)
    a.raw(f"; @launch grid=(256,1,1) block=({NWAVES*64},1,1) lds={LDS_BYTES}")
    a.raw('.amdgcn_target "amdgcn-amd-amdhsa--gfx950"')
    a.raw(".text")
    a.raw(f".globl {KNAME}")
    a.raw(".p2align 8")
    a.raw(f".type {KNAME},@function")
    a.raw(f"{KNAME}:")
    nst = [0]
    def stamp(i):
        if stamps:
            a(f"s_memrealtime s[{64+2*i}:{65+2*i}]")
    def finish():
        if stamps:
            a("s_branch L_stamp_out")
        else:
            a("s_endpgm")
    def spin(name, off, cmpop, val, sreg="s40", vreg="v3", vz="v2"):
        a(f"""
        s_mov_b32 s50, 0x40000
        {name}:
        ds_read_b32 {vreg}, {vz} offset:{off}
        s_waitcnt lgkmcnt(0)
        v_readfirstlane_b32 {sreg}, {vreg}
        s_cmp_{cmpop}_u32 {sreg}, {val}
        s_cbranch_scc1 {name}_done
        s_sleep 1
        s_sub_u32 s50, s50, 1
        s_cbranch_scc0 {name}
        s_endpgm
        {name}_done:
        """)
    def masks():
        a("""
        v_and_b32 v8, 1, v0
        v_lshlrev_b32 v8, 4, v8
        v_mov_b32 v9, 0xffff
        v_lshlrev_b32 v8, v8, v9
        v_bfe_u32 v9, v0, 1, 2
        v_cmp_eq_u32 vcc, 0, v9
        v_cndmask_b32 v4, 0, v8, vcc
        v_cmp_eq_u32 vcc, 1, v9
        v_cndmask_b32 v5, 0, v8, vcc
        v_cmp_eq_u32 vcc, 2, v9
        v_cndmask_b32 v6, 0, v8, vcc
        v_cmp_eq_u32 vcc, 3, v9
        v_cndmask_b32 v7, 0, v8, vcc
        """)
    DPPF = "row_mask:0xf bank_mask:0xf"

    if stamps:
        for i in range(1, 8):
            a(f"s_mov_b64 s[{64+2*i}:{65+2*i}], 0")
    stamp(0)
    a(f"""
    v_readfirstlane_b32 s3, v0
    s_cmp_ge_u32 s2, 256
    s_cbranch_scc1 L_exit
    v_and_b32 v0, 63, v0
    v_mov_b32 v2, 0
    s_cmp_lt_u32 s3, {(NWAVES-1)*64}
    s_cbranch_scc1 L_noz
    v_lshlrev_b32 v1, 2, v0
    ds_write_b32 v1, v2
    s_waitcnt lgkmcnt(0)
    L_noz:
    s_load_dwordx16 s[4:19], s[0:1], 0
    s_load_dwordx8 s[20:27], s[0:1], 64
    s_load_dwordx4 s[28:31], s[0:1], 96
    s_and_b32 s32, s2, 7
    s_lshr_b32 s33, s2, 3
    s_lshl_b32 s34, s32, 1
    s_lshr_b32 s35, s33, 4
    s_add_u32 s34, s34, s35
    s_and_b32 s35, s33, 15
    s_lshr_b32 s3, s3, 6
    s_barrier
    s_cmp_eq_u32 s3, 0
    s_cbranch_scc1 L_Q
    s_cmp_ge_u32 s3, 9
    s_cbranch_scc1 L_L
    """)
    a(f"""
    s_lshl_b32 s36, s34, 24
    s_lshl_b32 s37, s35, 16
    s_add_u32 s36, s36, s37
    s_lshl_b32 s37, s3, 13
    s_add_u32 s36, s36, s37
    s_add_u32 s36, s36, {61440*256 + 4096 - 8192}
    v_and_b32 v1, 12, v0
    v_lshlrev_b32 v1, 6, v1
    v_and_b32 v3, 48, v0
    v_lshl_add_u32 v1, v3, 2, v1
    v_and_b32 v3, 3, v0
    v_lshl_add_u32 v1, v3, 4, v1
    v_lshlrev_b32 v3, 4, v0
    s_waitcnt lgkmcnt(0)
    s_add_u32 s6, s6, s36
    s_addc_u32 s7, s7, 0
    s_add_u32 s8, s8, s36
    s_addc_u32 s9, s9, 0
    """)
    for i in range(8):
        a(f"global_load_dwordx4 v[{32+4*i}:{35+4*i}], v1, s[6:7] offset:{i*1024-4096}{nt}")
    for i in range(8):
        a(f"global_load_dwordx4 v[{64+4*i}:{67+4*i}], v3, s[8:9] offset:{i*1024-4096}{nt}")
    a(f"""
    v_mov_b32 v1, 1
    s_mov_b64 exec, 1
    ds_add_u32 v2, v1 offset:{L_CISS}
    s_mov_b64 exec, -1
    """)
    stamp(1)
    masks()
    a(f"""
    v_and_b32 v8, 4, v0
    v_lshlrev_b32 v8, 6, v8
    v_and_b32 v9, 48, v0
    v_lshl_add_u32 v8, v9, 2, v8
    v_and_b32 v9, 3, v0
    v_lshl_add_u32 v96, v9, 4, v8
    v_and_b32 v9, 8, v0
    v_and_b32 v97, 48, v0
    v_lshl_add_u32 v97, v9, 3, v97
    v_add_u32 v98, 128, v97
    v_cmp_eq_u32 vcc, 0, v9
    s_mov_b32 s41, {f2u(CSC)}
    s_mov_b32 s42, 0x01000100
    s_mov_b32 s43, 0x03020302
    s_sub_u32 s44, s3, 1
    """)
    spin("L_Aq", L_FQ, "lg", 0)
    stamp(2)
    a(f"""
    ds_read_b128 v[12:15], v96 offset:{L_Q}
    s_waitcnt lgkmcnt(0)
    """)
    for d in range(4):
        a(f"v_cndmask_b32 v{8+d}, 0, v{12+d}, vcc")
    for d in range(4):
        a(f"v_cndmask_b32_e64 v{12+d}, v{12+d}, 0, vcc")
    a("s_waitcnt vmcnt(8)")
    for m in range(4):
        a(f"v_mfma_f32_16x16x32_bf16 v[{16+4*m}:{19+4*m}], v[8:11], v[{32+8*m}:{35+8*m}], 0")
    for m in range(4):
        a(f"v_mfma_f32_16x16x32_bf16 v[{16+4*m}:{19+4*m}], v[12:15], v[{36+8*m}:{39+8*m}], v[{16+4*m}:{19+4*m}]")
    for m in range(4):
        a(f"v_mov_b32_dpp v{100+m}, v{16+4*m} quad_perm:[0,0,0,0] {DPPF}")
    for r in range(1, 4):
        for m in range(4):
            a(f"v_add_f32_dpp v{100+m}, v{16+4*m+r}, v{100+m} quad_perm:[{r},{r},{r},{r}] {DPPF}")
    a(f"""
    v_max3_f32 v104, v100, v101, v102
    v_max_f32 v104, v104, v103
    v_max_f32_dpp v104, v104, v104 row_ror:4 {DPPF}
    v_max_f32_dpp v104, v104, v104 row_ror:8 {DPPF}
    v_mov_b32 v106, v104
    v_permlane32_swap_b32 v106, v104
    v_max_f32 v104, v104, v106
    v_mul_f32 v106, s41, v104
    """)
    for m in range(4):
        a(f"v_fma_f32 v{100+m}, v{100+m}, s41, -v106")
    for m in range(4):
        a(f"v_exp_f32 v{100+m}, v{100+m}")
    a(f"""
    v_cvt_pk_bf16_f32 v107, v100, v101
    v_cvt_pk_bf16_f32 v108, v102, v103
    ds_bpermute_b32 v110, v97, v107
    ds_bpermute_b32 v111, v98, v107
    ds_bpermute_b32 v112, v97, v108
    ds_bpermute_b32 v113, v98, v108
    v_add_f32 v105, v100, v101
    v_add_f32 v106, v102, v103
    v_add_f32 v105, v105, v106
    v_add_f32_dpp v105, v105, v105 row_ror:4 {DPPF}
    v_add_f32_dpp v105, v105, v105 row_ror:8 {DPPF}
    v_mov_b32 v106, v105
    v_permlane32_swap_b32 v106, v105
    v_add_f32 v105, v105, v106
    v_and_b32 v106, 16, v0
    v_lshlrev_b32 v106, 2, v106
    s_lshl_b32 s45, s44, 3
    v_add_u32 v106, s45, v106
    ds_write_b64 v106, v[104:105] offset:{L_SW}
    s_waitcnt lgkmcnt(1)
    """)
    for v in range(8):
        m, H = v >> 1, v & 1
        x = 110 + H + 2 * (m >> 1)
        sel = "s42" if (m & 1) == 0 else "s43"
        a(f"v_perm_b32 v109, v{x}, v{x}, {sel}")
        for d in range(4):
            a(f"v_and_b32 v{32+4*v+d}, v109, v{4+d}")
    stamp(3)
    for v in range(8):
        a(f"s_waitcnt vmcnt({7-v})")
        src = "0" if v == 0 else "v[16:19]"
        a(f"v_mfma_f32_16x16x32_bf16 v[16:19], v[{32+4*v}:{35+4*v}], v[{64+4*v}:{67+4*v}], {src}")
    stamp(4)
    a(f"""
    s_lshl_b32 s45, s44, 10
    v_lshlrev_b32 v3, 4, v0
    v_add_u32 v8, s45, v3
    v_mov_b32 v1, 1
    ds_write_b128 v8, v[16:19] offset:{L_OW}
    s_mov_b64 exec, 1
    ds_add_rtn_u32 v9, v2, v1 offset:{L_CDONE}
    s_mov_b64 exec, -1
    s_waitcnt lgkmcnt(0)
    v_readfirstlane_b32 s45, v9
    s_cmp_lg_u32 s45, 7
    s_cbranch_scc1 L_fin
    v_and_b32 v8, 32, v0
    v_lshlrev_b32 v9, 1, v8
    """)
    for k in range(4):
        a(f"ds_read_b128 v[{16+4*k}:{19+4*k}], v9 offset:{L_SW+16*k}")
    for w in range(8):
        a(f"ds_read_b128 v[{32+4*w}:{35+4*w}], v3 offset:{L_OW+1024*w}")
    a(f"""
    v_lshlrev_b32 v10, 8, v8
    v_and_b32 v11, 8, v0
    v_lshl_add_u32 v10, v11, 9, v10
    v_and_b32 v11, 16, v0
    v_lshl_add_u32 v10, v11, 3, v10
    v_and_b32 v11, 7, v0
    v_lshl_add_u32 v10, v11, 4, v10
    s_lshl_b32 s45, s34, 14
    s_lshl_b32 s46, s35, 8
    s_add_u32 s45, s45, s46
    s_add_u32 s45, s45, {WS_OP}
    v_add_u32 v10, s45, v10
    v_lshlrev_b32 v11, 3, v8
    s_lshl_b32 s45, s34, 9
    s_lshl_b32 s46, s35, 4
    s_add_u32 s45, s45, s46
    s_add_u32 s45, s45, {WS_ST}
    v_add_u32 v11, s45, v11
    s_and_b32 s40, s40, 0xff
    v_mov_b32 v12, s40
    s_mov_b32 s46, 0xffffff00
    s_waitcnt lgkmcnt(8)
    v_max3_f32 v13, v16, v18, v20
    v_max3_f32 v13, v13, v22, v24
    v_max3_f32 v13, v13, v26, v28
    v_max_f32 v13, v13, v30
    v_mul_f32 v14, s41, v13
    """)
    for w in range(8):
        a(f"v_fma_f32 v{16+2*w}, v{16+2*w}, s41, -v14")
    for w in range(8):
        a(f"v_exp_f32 v{16+2*w}, v{16+2*w}")
    a("v_mul_f32 v14, v16, v17")
    for w in range(1, 8):
        a(f"v_fmac_f32 v14, v{16+2*w}, v{17+2*w}")
    a(f"""
    v_and_or_b32 v64, v13, s46, v12
    v_lshl_or_b32 v65, v13, 8, v12
    v_and_or_b32 v66, v14, s46, v12
    v_mov_b32 v67, v12
    s_waitcnt lgkmcnt(0)
    """)
    for r in range(4):
        a(f"v_mul_f32 v{68+r}, v16, v{32+r}")
    for w in range(1, 8):
        for r in range(4):
            a(f"v_fmac_f32 v{68+r}, v{16+2*w}, v{32+4*w+r}")
    for r in range(4):
        a(f"v_and_or_b32 v{68+r}, v{68+r}, s46, v12")
    a(f"""
    global_store_dwordx4 v10, v[68:71], s[30:31] sc1
    s_mov_b32 exec_lo, 1
    s_mov_b32 exec_hi, 1
    global_store_dwordx4 v11, v[64:67], s[30:31] sc1
    """)
    stamp(5)
    a("L_fin:")
    finish()

    a(f"""
    L_Q:
    s_and_b32 s36, s35, 3
    s_lshr_b32 s37, s35, 2
    s_lshl_b32 s38, s34, 2
    s_add_u32 s38, s38, s37
    s_mul_i32 s39, s36, {144*8192}
    s_lshl_b32 s38, s38, 7
    s_add_u32 s39, s39, s38
    s_mul_i32 s38, s36, 288
    v_lshrrev_b32 v3, 3, v0
    v_mul_u32_u24 v1, {18*8192}, v3
    v_and_b32 v8, 7, v0
    v_lshl_add_u32 v1, v8, 4, v1
    v_mul_u32_u24 v3, 36, v3
    v_add_u32 v3, s38, v3
    s_waitcnt lgkmcnt(0)
    s_add_u32 s10, s10, s39
    s_addc_u32 s11, s11, 0
    global_load_dwordx4 v[104:107], v3, s[4:5]
    global_load_dwordx4 v[108:111], v3, s[4:5] offset:16
    global_load_dword v112, v3, s[4:5] offset:32
    global_load_dword v113, v2, s[30:31] sc1
    """)
    for t in range(18):
        a(f"global_load_dwordx4 v[{32+4*t}:{35+4*t}], v1, s[10:11]{nt}")
        if t < 17: a("v_add_u32 v1, 0x2000, v1")
    stamp(1)
    masks()
    a(f"""
    s_mov_b32 s42, 0x01000100
    s_mov_b32 s43, 0x03020302
    s_mov_b32 s46, 0xffffff00
    v_and_b32 v8, 7, v0
    v_lshlrev_b32 v8, 5, v8
    v_and_b32 v9, 16, v0
    v_add_u32 v8, v8, v9
    v_lshrrev_b32 v9, 5, v0
    v_lshl_add_u32 v8, v9, 3, v8
    s_lshl_b32 s44, s34, 12
    s_add_u32 s44, s44, {WS_QP}
    s_lshl_b32 s45, s36, 10
    s_lshl_b32 s47, s37, 8
    s_add_u32 s45, s45, s47
    s_add_u32 s45, s45, s44
    v_add_u32 v8, s45, v8
    v_lshlrev_b32 v9, 4, v0
    v_add_u32 v9, s44, v9
    s_waitcnt vmcnt(18)
    v_add_u32 v113, 1, v113
    v_and_b32 v12, 0xff, v113
    """)
    for t in range(18):
        A0 = 20 + 4 * (t & 1)
        sel = "s42" if (t & 1) == 0 else "s43"
        x = 104 + (t >> 1)
        a(f"v_perm_b32 v10, v{x}, v{x}, {sel}")
        for d in range(4):
            a(f"v_and_b32 v{A0+d}, v10, v{4+d}")
        a(f"s_waitcnt vmcnt({17-t})")
        src = "0" if t == 0 else "v[28:31]"
        a(f"v_mfma_f32_16x16x32_bf16 v[28:31], v[{A0}:{A0+3}], v[{32+4*t}:{35+4*t}], {src}")
    stamp(2)
    a(f"""
    v_permlane32_swap_b32 v28, v30
    v_permlane32_swap_b32 v29, v31
    v_add_f32_dpp v28, v30, v28 row_ror:8 {DPPF}
    v_add_f32_dpp v29, v31, v29 row_ror:8 {DPPF}
    v_and_or_b32 v28, v28, s46, v12
    v_and_or_b32 v29, v29, s46, v12
    s_mov_b32 exec_lo, 0x00ff00ff
    s_mov_b32 exec_hi, 0x00ff00ff
    global_store_dwordx2 v8, v[28:29], s[30:31] sc1
    s_mov_b64 exec, -1
    s_waitcnt vmcnt(0)
    """)
    stamp(3)
    a("s_mov_b32 s50, 0x4000")
    a("L_Qpoll:")
    a("s_sub_u32 s50, s50, 1")
    a("s_cbranch_scc1 L_exit")
    for t in range(4):
        a(f"global_load_dwordx4 v[{32+4*t}:{35+4*t}], v9, s[30:31] offset:{1024*t} sc1")
    a("v_mov_b32 v10, 0")
    for t in range(4):
        a(f"s_waitcnt vmcnt({3-t})")
        for d in range(4):
            a(f"v_bitop3_b32 v10, v{32+4*t+d}, v10, v12 bitop3:0xde")
    a(f"""
    v_and_b32 v10, 0xff, v10
    v_cmp_ne_u32 vcc, 0, v10
    s_cbranch_vccnz L_Qpoll
    """)
    for d in range(4):
        a(f"v_add_f32 v{32+d}, v{32+d}, v{36+d}")
        a(f"v_add_f32 v{40+d}, v{40+d}, v{44+d}")
    for d in range(4):
        a(f"v_add_f32 v{32+d}, v{32+d}, v{40+d}")
    a(f"""
    v_cvt_pk_bf16_f32 v32, v32, v33
    v_cvt_pk_bf16_f32 v33, v34, v35
    v_lshlrev_b32 v8, 3, v0
    v_or_b32 v10, 0x100, v12
    ds_write_b64 v8, v[32:33] offset:{L_Q}
    ds_write_b32 v2, v113 offset:32
    ds_write_b32 v2, v10 offset:{L_FQ}
    """)
    stamp(4)
    a(f"""
    s_cmp_lt_u32 s33, 18
    s_cbranch_scc1 L_fin
    s_cmp_ge_u32 s33, 26
    s_cbranch_scc1 L_fin
    ; ---- o consumer ----
    s_lshl_b32 s36, s32, 3
    s_add_u32 s36, s36, s33
    s_sub_u32 s36, s36, 18
    s_lshl_b32 s37, s36, 12
    s_add_u32 s37, s37, {WS_OP}
    v_lshlrev_b32 v9, 4, v0
    v_add_u32 v9, s37, v9
    s_lshr_b32 s37, s36, 1
    s_lshl_b32 s37, s37, 8
    s_add_u32 s37, s37, {WS_ST}
    v_and_b32 v8, 15, v0
    v_lshlrev_b32 v8, 4, v8
    v_add_u32 v8, s37, v8
    v_lshrrev_b32 v14, 4, v0
    v_lshlrev_b32 v14, 2, v14
    v_add_u32 v15, 16, v14
    v_add_u32 v16, 32, v14
    v_add_u32 v17, 48, v14
    v_and_b32 v18, 7, v0
    v_lshlrev_b32 v18, 5, v18
    v_and_b32 v19, 8, v0
    v_lshl_add_u32 v18, v19, 1, v18
    v_and_b32 v19, 16, v0
    v_lshrrev_b32 v19, 1, v19
    v_add_u32 v18, v18, v19
    v_lshrrev_b32 v19, 5, v0
    v_lshl_add_u32 v18, v19, 2, v18
    s_mov_b32 s41, {f2u(CSC)}
    s_mov_b32 s42, 0x07060501
    """)
    spin("L_Qg", L_CDONE, "ge", 8)
    a("s_mov_b32 s50, 0x4000")
    a("L_Opoll:")
    a("s_sub_u32 s50, s50, 1")
    a("s_cbranch_scc1 L_exit")
    a(f"global_load_dwordx4 v[48:51], v8, s[30:31] sc1")
    for t in range(4):
        a(f"global_load_dwordx4 v[{32+4*t}:{35+4*t}], v9, s[30:31] offset:{1024*t} sc1")
    a("v_mov_b32 v10, 0")
    a("s_waitcnt vmcnt(4)")
    for d in range(4):
        a(f"v_bitop3_b32 v10, v{48+d}, v10, v12 bitop3:0xde")
    a(f"""
    v_perm_b32 v48, v48, v49, s42
    v_max_f32_dpp v20, v48, v48 row_ror:1 {DPPF}
    v_max_f32_dpp v20, v20, v20 row_ror:2 {DPPF}
    v_max_f32_dpp v20, v20, v20 row_ror:4 {DPPF}
    v_max_f32_dpp v20, v20, v20 row_ror:8 {DPPF}
    v_sub_f32 v20, v48, v20
    v_mul_f32 v20, s41, v20
    v_exp_f32 v20, v20
    v_mul_f32 v21, v20, v50
    v_add_f32_dpp v21, v21, v21 row_ror:1 {DPPF}
    v_add_f32_dpp v21, v21, v21 row_ror:2 {DPPF}
    v_add_f32_dpp v21, v21, v21 row_ror:4 {DPPF}
    v_add_f32_dpp v21, v21, v21 row_ror:8 {DPPF}
    v_rcp_f32 v21, v21
    v_mul_f32 v20, v20, v21
    ds_bpermute_b32 v24, v14, v20
    ds_bpermute_b32 v25, v15, v20
    ds_bpermute_b32 v26, v16, v20
    ds_bpermute_b32 v27, v17, v20
    """)
    for t in range(4):
        a(f"s_waitcnt vmcnt({3-t})")
        for d in range(4):
            a(f"v_bitop3_b32 v10, v{32+4*t+d}, v10, v12 bitop3:0xde")
    a(f"""
    v_and_b32 v10, 0xff, v10
    v_cmp_ne_u32 vcc, 0, v10
    s_waitcnt lgkmcnt(0)
    s_cbranch_vccnz L_Opoll
    """)
    stamp(5)
    for d in range(4):
        a(f"v_mul_f32 v{32+d}, v24, v{32+d}")
    for t in range(1, 4):
        for d in range(4):
            a(f"v_fmac_f32 v{32+d}, v{24+t}, v{32+4*t+d}")
    a(f"""
    v_permlane32_swap_b32 v32, v33
    v_permlane32_swap_b32 v34, v35
    v_add_f32 v32, v32, v33
    v_add_f32 v34, v34, v35
    v_permlane16_swap_b32 v32, v34
    v_add_f32 v32, v32, v34
    v_cvt_pk_bf16_f32 v32, v32, v32
    v_mov_b32 v10, 1
    ds_write_b32 v18, v32 offset:{L_OB}
    ds_write_b32 v2, v10 offset:{L_FO}
    """)
    stamp(6)
    finish()

    a(f"""
    L_L:
    s_sub_u32 s44, s3, 9
    s_getpc_b64 s[48:49]
    L_pc:
    s_sub_u32 s48, s48, L_pc - {KNAME}
    s_subb_u32 s49, s49, 0
    s_mul_i32 s45, s44, 3328
    v_lshlrev_b32 v3, 6, v0
    v_add_u32 v3, s45, v3
    global_load_dword v32, v3, s[48:49]
    s_cmp_ge_u32 s33, 26
    s_cbranch_scc1 L_R
    """)
    masks()
    a(f"""
    v_lshrrev_b32 v8, 3, v0
    v_mul_u32_u24 v1, 1152, v8
    v_and_b32 v9, 7, v0
    v_lshl_add_u32 v1, v9, 4, v1
    s_mul_i32 s45, s44, 384
    v_add_u32 v1, s45, v1
    v_and_b32 v9, 3, v0
    v_lshl_add_u32 v30, v9, 3, v8
    v_lshlrev_b32 v30, 2, v30
    v_bfe_u32 v8, v0, 2, 1
    v_bfe_u32 v10, v0, 4, 1
    v_lshl_add_u32 v8, v10, 1, v8
    v_mul_u32_u24 v31, 13312, v8
    v_lshl_add_u32 v31, v9, 4, v31
    s_mul_i32 s47, s44, {12*13312}
    s_add_u32 s47, s47, {WS_FP}
    s_mov_b32 s46, 0xffffff00
    s_cmp_ge_u32 s33, 18
    s_cbranch_scc1 L_W
    ; ---- FFN ----
    s_mul_i32 s36, s32, 18
    s_add_u32 s36, s36, s33
    s_lshl_b32 s37, s36, 6
    s_add_u32 s47, s47, s37
    s_add_u32 s47, s47, {64*64}
    s_mul_i32 s38, s44, {192*9216}
    s_add_u32 s38, s38, s37
    s_mul_i32 s39, s36, {32*1152}
    v_lshrrev_b32 v8, 2, v0
    v_mul_u32_u24 v3, {12*9216}, v8
    v_lshl_add_u32 v3, v9, 4, v3
    v_mul_u32_u24 v8, 24, v8
    s_mul_i32 s45, s44, 384
    v_add_u32 v8, s45, v8
    v_lshrrev_b32 v9, 1, v30
    v_add_u32 v9, s37, v9
    s_waitcnt lgkmcnt(0)
    s_add_u32 s16, s16, s38
    s_addc_u32 s17, s17, 0
    s_add_u32 s20, s20, s39
    s_addc_u32 s21, s21, 0
    global_load_dwordx4 v[24:27], v8, s[4:5]
    global_load_dwordx2 v[28:29], v8, s[4:5] offset:16
    global_load_ushort v14, v9, s[18:19]
    """)
    spin("L_Fi", L_CISS, "ge", 8, vreg="v10")
    stamp(1)
    for t in range(12):
        a(f"global_load_dwordx4 v[{32+4*t}:{35+4*t}], v3, s[16:17]{nt}")
        if t < 11: a("v_add_u32 v3, 9216, v3")
    for rg in range(4):
        for k in range(3):
            a(f"global_load_dwordx4 v[{80+12*rg+4*k}:{83+12*rg+4*k}], v1, s[20:21] offset:{128*k}{nt}")
        if rg < 3: a("v_add_u32 v1, 9216, v1")
    stamp(2)
    a(f"""
    s_mov_b32 s42, 0x05040100
    s_mov_b32 s43, 0x07060302
    """)
    for e in range(8):
        a(f"v_mov_b32 v{16+e}, 0")
    for p in range(6):
        a(f"s_waitcnt vmcnt({22-2*p})")
        r0, r1 = 32 + 8 * p, 36 + 8 * p
        for d in range(4):
            a(f"v_perm_b32 v{8+d}, v{r1+d}, v{r0+d}, s42")
        for d in range(4):
            a(f"v_perm_b32 v{r0+d}, v{r1+d}, v{r0+d}, s43")
        for d in range(4):
            a(f"v_dot2c_f32_bf16 v{16+2*d}, v{8+d}, v{24+p}")
        for d in range(4):
            a(f"v_dot2c_f32_bf16 v{17+2*d}, v{r0+d}, v{24+p}")
    stamp(3)
    a(f"""
    v_permlane32_swap_b32 v16, v17
    v_permlane32_swap_b32 v18, v19
    v_permlane32_swap_b32 v20, v21
    v_permlane32_swap_b32 v22, v23
    v_add_f32 v16, v16, v17
    v_add_f32 v18, v18, v19
    v_add_f32 v20, v20, v21
    v_add_f32 v22, v22, v23
    v_permlane16_swap_b32 v16, v18
    v_permlane16_swap_b32 v20, v22
    v_add_f32 v16, v16, v18
    v_add_f32 v20, v20, v22
    v_add_f32_dpp v16, v16, v16 row_ror:4 {DPPF}
    v_add_f32_dpp v20, v20, v20 row_ror:4 {DPPF}
    v_and_b32 v8, 3, v0
    v_lshlrev_b32 v8, 5, v8
    v_add_f32_dpp v16, v16, v16 row_ror:8 {DPPF}
    v_add_f32_dpp v20, v20, v20 row_ror:8 {DPPF}
    v_bfe_u32 v9, v0, 4, 1
    v_lshl_add_u32 v8, v9, 3, v8
    v_lshrrev_b32 v9, 5, v0
    v_lshl_add_u32 v8, v9, 2, v8
    s_lshl_b32 s45, s44, 7
    v_add_u32 v8, s45, v8
    v_mov_b32 v9, 1
    ds_write_b32 v8, v16 offset:{L_HP}
    ds_write_b32 v8, v20 offset:{L_HP+16}
    s_mov_b64 exec, 1
    ds_add_u32 v2, v9 offset:{L_CH}
    s_mov_b64 exec, -1
    """)
    spin("L_Fq", L_FQ, "lg", 0, vreg="v12")
    spin("L_Fh", L_CH, "ge", 3, vreg="v10")
    GC1 = -2.0 * math.log2(math.e) * math.sqrt(2.0 / math.pi)
    GC3 = GC1 * 0.044715
    a(f"""
    ds_read_b32 v8, v30 offset:{L_HP}
    ds_read_b32 v9, v30 offset:{L_HP+128}
    ds_read_b32 v10, v30 offset:{L_HP+256}
    v_lshlrev_b32 v14, 16, v14
    s_mov_b32 s42, {f2u(GC3)}
    v_mov_b32 v11, {f2u(GC1)}
    s_waitcnt lgkmcnt(0)
    v_add_f32 v8, v8, v9
    v_add_f32 v8, v8, v10
    v_cvt_pk_bf16_f32 v8, v8, v8
    v_and_b32 v8, 0xffff0000, v8
    v_add_f32 v8, v8, v14
    v_cvt_pk_bf16_f32 v8, v8, v8
    v_and_b32 v8, 0xffff0000, v8
    v_mul_f32 v9, v8, v8
    v_fma_f32 v9, v9, s42, v11
    v_mul_f32 v9, v9, v8
    v_exp_f32 v9, v9
    v_add_f32 v9, 1.0, v9
    v_rcp_f32 v9, v9
    v_mul_f32 v8, v8, v9
    v_cvt_pk_bf16_f32 v29, v8, v8
    """)
    for i in range(12):
        a(f"v_mov_b32 v{16+i}, 0")
    stamp(4)
    a("s_branch L_S2")
    a(f"""
    L_W:
    s_lshl_b32 s36, s32, 3
    s_add_u32 s36, s36, s33
    s_sub_u32 s36, s36, 18
    s_lshl_b32 s37, s36, 6
    s_add_u32 s47, s47, s37
    s_mul_i32 s39, s36, {64*1152}
    s_waitcnt lgkmcnt(0)
    s_add_u32 s12, s12, s39
    s_addc_u32 s13, s13, 0
    """)
    spin("L_Wi", L_CISS, "ge", 8, vreg="v10")
    stamp(1)
    for rg in range(8):
        for k in range(3):
            a(f"global_load_dwordx4 v[{32+12*rg+4*k}:{35+12*rg+4*k}], v1, s[12:13] offset:{128*k}{nt}")
        if rg < 7: a("v_add_u32 v1, 9216, v1")
    stamp(2)
    for i in range(12):
        a(f"v_mov_b32 v{16+i}, 0")
    spin("L_Wo", L_FO, "lg", 0, vreg="v10")
    a(f"""
    ds_read_b32 v28, v30 offset:{L_OB}
    ds_read_b32 v29, v30 offset:{L_OB+128}
    ds_read_b32 v12, v2 offset:{L_FQ}
    s_waitcnt lgkmcnt(0)
    """)
    stamp(4)
    def stage(rg):
        h = 28 + (rg >> 2)
        q = rg & 3
        A0 = 8 if (rg & 1) == 0 else 0
        return h, q
    for rg in range(8):
        if rg == 4:
            a("L_S2:")
            a("s_nop 1")
        h = 28 + (rg >> 2); q = rg & 3
        for d in range(4):
            a(f"v_and_b32_dpp v{8+d}, v{h}, v{4+d} quad_perm:[{q},{q},{q},{q}] {DPPF}")
        for k in range(3):
            a(f"s_waitcnt vmcnt({23-3*rg-k})")
            a(f"v_mfma_f32_16x16x32_bf16 v[{16+4*k}:{19+4*k}], v[8:11], v[{32+12*rg+4*k}:{35+12*rg+4*k}], v[{16+4*k}:{19+4*k}]")
    stamp(5)
    a(f"""
    v_and_b32 v12, 0xff, v12
    v_add_u32 v31, s47, v31
    v_lshrrev_b32 v8, 5, v0
    v_mul_u32_u24 v9, {4*13312}, v8
    v_add_u32 v9, v31, v9
    v_lshl_add_u32 v10, v8, 3, v31
    v_add_u32 v10, {8*13312}, v10
    """)
    for r in range(4):
        a(f"v_permlane32_swap_b32 v{16+r}, v{20+r}")
    a("v_permlane32_swap_b32 v24, v26")
    a("v_permlane32_swap_b32 v25, v27")
    for r in range(4):
        a(f"v_add_f32_dpp v{16+r}, v{20+r}, v{16+r} row_ror:8 {DPPF}")
    a(f"v_add_f32_dpp v24, v26, v24 row_ror:8 {DPPF}")
    a(f"v_add_f32_dpp v25, v27, v25 row_ror:8 {DPPF}")
    for r in (16, 17, 18, 19, 24, 25):
        a(f"v_and_or_b32 v{r}, v{r}, s46, v12")
    a(f"""
    s_mov_b32 exec_lo, 0x00ff00ff
    s_mov_b32 exec_hi, 0x00ff00ff
    global_store_dwordx4 v9, v[16:19], s[30:31] sc1
    global_store_dwordx2 v10, v[24:25], s[30:31] sc1
    """)
    stamp(6)
    finish()

    a(f"""
    L_R:
    s_cmp_lg_u32 s44, 0
    s_cbranch_scc1 L_fin
    s_sub_u32 s36, s33, 26
    s_lshl_b32 s36, s36, 3
    s_add_u32 s36, s36, s32
    s_cmp_ge_u32 s36, 36
    s_cbranch_scc1 L_fin
    s_lshr_b32 s37, s36, 2
    s_lshl_b32 s37, s37, 6
    s_and_b32 s38, s36, 1
    s_lshl_b32 s38, s38, 5
    s_add_u32 s37, s37, s38
    s_and_b32 s38, s36, 2
    s_lshl_b32 s38, s38, 1
    s_add_u32 s37, s37, s38
    v_and_b32 v8, 3, v0
    v_lshlrev_b32 v8, 3, v8
    v_lshrrev_b32 v9, 4, v0
    v_add3_u32 v8, v8, v9, s37
    v_lshlrev_b32 v8, 1, v8
    v_lshlrev_b32 v3, 2, v0
    v_mov_b32 v20, 0
    v_mov_b32 v25, 0
    s_waitcnt lgkmcnt(0)
    global_load_ushort v9, v8, s[22:23]
    """)
    for i in range(4):
        a(f"global_load_dword v{16+i}, v3, s[4:5] offset:{256*i}")
        a(f"global_load_dword v{21+i}, v3, s[24:25] offset:{256*i}")
    a(f"""
    s_mov_b32 exec_hi, 0
    global_load_dword v20, v3, s[4:5] offset:1024
    global_load_dword v25, v3, s[24:25] offset:1024
    s_mov_b32 exec_hi, -1
    s_mul_i32 s38, s36, 13312
    s_add_u32 s38, s38, {WS_FP + 4096}
    v_lshlrev_b32 v1, 4, v0
    v_add_u32 v1, s38, v1
    v_add_u32 v4, 0x2000, v1
    v_mov_b32 v10, 0
    v_mov_b32 v11, 0x3f803f80
    s_waitcnt vmcnt(0)
    """)
    for i in range(5):
        a(f"""
        v_lshlrev_b32 v12, 16, v{16+i}
        v_and_b32 v13, 0xffff0000, v{16+i}
        v_lshlrev_b32 v14, 16, v{21+i}
        v_and_b32 v15, 0xffff0000, v{21+i}
        v_mul_f32 v12, v12, v14
        v_mul_f32 v13, v13, v15
        v_cvt_pk_bf16_f32 v12, v12, v13
        v_dot2c_f32_bf16 v10, v12, v11
        """)
    a(f"""
    v_add_f32_dpp v10, v10, v10 row_ror:1 {DPPF}
    v_add_f32_dpp v10, v10, v10 row_ror:2 {DPPF}
    v_add_f32_dpp v10, v10, v10 row_ror:4 {DPPF}
    v_add_f32_dpp v10, v10, v10 row_ror:8 {DPPF}
    v_mov_b32 v11, v10
    v_permlane16_swap_b32 v11, v10
    v_add_f32 v10, v10, v11
    v_mov_b32 v11, v10
    v_permlane32_swap_b32 v11, v10
    v_add_f32 v10, v10, v11
    v_cvt_pk_bf16_f32 v10, v10, v10
    v_and_b32 v10, 0xffff0000, v10
    v_mul_f32 v10, {f2u(-math.log2(math.e))}, v10
    v_exp_f32 v10, v10
    v_add_f32 v10, 1.0, v10
    v_rcp_f32 v10, v10
    v_cvt_pk_bf16_f32 v10, v10, v10
    v_and_b32 v5, 0xffff0000, v10
    v_sub_f32 v6, 1.0, v5
    v_cvt_pk_bf16_f32 v6, v6, v6
    v_and_b32 v6, 0xffff0000, v6
    v_lshlrev_b32 v7, 16, v9
    """)
    stamp(1)
    spin("L_Rg", L_CDONE, "ge", 8, vreg="v10")
    a(f"""
    ds_read_b32 v12, v2 offset:{L_FQ}
    ds_read_b32 v13, v2 offset:32
    s_waitcnt lgkmcnt(0)
    v_and_b32 v12, 0xff, v12
    """)
    stamp(2)
    a("s_mov_b32 s50, 0x4000")
    a("L_Rpoll:")
    a("s_sub_u32 s50, s50, 1")
    a("s_cbranch_scc1 L_exit")
    for t in range(13):
        base, off = ("v1", 1024 * t - 4096) if t < 8 else ("v4", 1024 * (t - 8) - 4096)
        a(f"global_load_dwordx4 v[{32+4*t}:{35+4*t}], {base}, s[30:31] offset:{off} sc1")
    a("v_mov_b32 v10, 0")
    for t in range(13):
        a(f"s_waitcnt vmcnt({12-t})")
        for d in range(4):
            a(f"v_bitop3_b32 v10, v{32+4*t+d}, v10, v12 bitop3:0xde")
        if t not in (0, 4):
            acc = 32 if t < 4 else 48
            for d in range(4):
                a(f"v_add_f32 v{acc+d}, v{acc+d}, v{32+4*t+d}")
    a(f"""
    v_and_b32 v10, 0xff, v10
    v_cmp_ne_u32 vcc, 0, v10
    s_cbranch_vccnz L_Rpoll
    """)
    stamp(3)
    for e in range(4):
        a(f"v_permlane32_swap_b32 v{32+e}, v{48+e}")
    for e in range(4):
        a(f"v_add_f32 v{32+e}, v{32+e}, v{48+e}")
    a(f"""
    v_permlane16_swap_b32 v32, v33
    v_permlane16_swap_b32 v34, v35
    v_add_f32 v32, v32, v33
    v_add_f32 v34, v34, v35
    v_add_f32_dpp v32, v32, v32 row_ror:4 {DPPF}
    v_add_f32_dpp v34, v34, v34 row_ror:4 {DPPF}
    v_add_f32_dpp v32, v32, v32 row_ror:8 {DPPF}
    v_add_f32_dpp v34, v34, v34 row_ror:8 {DPPF}
    v_permlane32_swap_b32 v32, v34
    v_cvt_pk_bf16_f32 v32, v32, v34
    v_and_b32 v34, 0xffff0000, v32
    v_lshlrev_b32 v32, 16, v32
    v_add_f32 v34, v34, v7
    v_cvt_pk_bf16_f32 v34, v34, v34
    v_and_b32 v34, 0xffff0000, v34
    v_mul_f32 v32, v32, v5
    v_mul_f32 v34, v34, v6
    v_cvt_pk_bf16_f32 v32, v32, v34
    v_and_b32 v34, 0xffff0000, v32
    v_lshlrev_b32 v32, 16, v32
    v_add_f32 v32, v32, v34
    v_cvt_pk_bf16_f32 v32, v32, v32
    s_mov_b32 exec_lo, 0x000f000f
    s_mov_b32 exec_hi, 0x000f000f
    global_store_short v8, v32, s[26:27]
    s_cmp_lg_u32 s36, 0
    s_cbranch_scc1 L_fin
    s_mov_b64 exec, 1
    global_store_dword v2, v13, s[30:31] sc1
    """)
    finish()
    if stamps:
        a(f"""
        L_stamp_out:
        s_memrealtime s[78:79]
        s_mov_b64 exec, 1
        s_waitcnt lgkmcnt(0)
        s_lshl_b32 s60, s2, 4
        s_add_u32 s60, s60, s3
        s_lshl_b32 s60, s60, 5
        s_add_u32 s60, s60, {WS_DBG}
        v_mov_b32 v1, s60
        """)
        for i in range(8):
            a(f"v_mov_b32 v{120+i}, s{64+2*i}")
        a("""
        global_store_dwordx4 v1, v[120:123], s[30:31]
        global_store_dwordx4 v1, v[124:127], s[30:31] offset:16
        """)
    a("L_exit:")
    a("s_endpgm")
    a.raw("L_codeend:")
    a.raw(f".if (L_codeend - {KNAME}) > 10752")
    a.raw(".error \"code too long for the prefetch\"")
    a.raw(".endif")
    a.raw(f".fill (10752 - (L_codeend - {KNAME})) / 4, 4, 0xbf800000")
    a.raw('.section .rodata,"a"')
    a.raw(".p2align 6")
    a.raw(f".amdhsa_kernel {KNAME}")
    a.raw("  .amdhsa_next_free_vgpr 128")
    a.raw("  .amdhsa_next_free_sgpr 96")
    a.raw("  .amdhsa_accum_offset 128")
    a.raw("  .amdhsa_group_segment_fixed_size 0")
    a.raw("  .amdhsa_kernarg_size 112")
    a.raw("  .amdhsa_user_sgpr_count 2")
    a.raw("  .amdhsa_user_sgpr_kernarg_segment_ptr 1")
    a.raw("  .amdhsa_system_sgpr_workgroup_id_x 1")
    a.raw(".end_amdhsa_kernel")
    return a.text()

if __name__ == "__main__":
    open('k1.s', 'w').write(gen())
    open('k1_st.s', 'w').write(gen(stamps=True))
```

```python
import sys, math
from asmlib import Asm
KNAME = "gated_mix__sliding_block_cached__dense_activation_gelu__decode_kernel"

WS_E = 0
WS_QP = 0x1000
WS_ST = 0x12000
WS_OP = 0x20000
WS_FP = 0x80000
WS_DBG = 0x200000
L_CISS, L_FQ, L_CDONE, L_CH, L_FO = 0, 4, 8, 12, 16
L_Q = 64
L_SW = 640
L_HP = 768
L_OB = 1152
L_OW = 2048
LDS_BYTES = 10240
NWAVES = 12
import struct
def f2u(f): return struct.unpack('<I', struct.pack('<f', f))[0]
CSC = (128 ** -0.5) * math.log2(math.e)

def gen(stamps=False, nt=" nt"):
    a = Asm()
    hdr = open('gated_mix__sliding_block_cached__dense_activation_gelu__decode.s.ref').read().split('\n')
    for l in hdr:
        if l.startswith('; @launch'): break
        a.raw(l)
    a.raw(f"; @launch grid=(256,1,1) block=({NWAVES*64},1,1) lds={LDS_BYTES}")
    a.raw('.amdgcn_target "amdgcn-amd-amdhsa--gfx950"')
    a.raw(".text")
    a.raw(f".globl {KNAME}")
    a.raw(".p2align 8")
    a.raw(f".type {KNAME},@function")
    a.raw(f"{KNAME}:")
    nst = [0]
    def stamp(i):
        if stamps:
            a(f"s_memrealtime s[{64+2*i}:{65+2*i}]")
    def finish():
        if stamps:
            a("s_branch L_stamp_out")
        else:
            a("s_endpgm")
    def spin(name, off, cmpop, val, sreg="s40", vreg="v3", vz="v2"):
        a(f"""
        s_mov_b32 s50, 0x40000
        {name}:
        ds_read_b32 {vreg}, {vz} offset:{off}
        s_waitcnt lgkmcnt(0)
        v_readfirstlane_b32 {sreg}, {vreg}
        s_cmp_{cmpop}_u32 {sreg}, {val}
        s_cbranch_scc1 {name}_done
        s_sleep 1
        s_sub_u32 s50, s50, 1
        s_cbranch_scc0 {name}
        s_endpgm
        {name}_done:
        """)
    def masks():
        a("""
        v_and_b32 v8, 1, v0
        v_lshlrev_b32 v8, 4, v8
        v_mov_b32 v9, 0xffff
        v_lshlrev_b32 v8, v8, v9
        v_bfe_u32 v9, v0, 1, 2
        v_cmp_eq_u32 vcc, 0, v9
        v_cndmask_b32 v4, 0, v8, vcc
        v_cmp_eq_u32 vcc, 1, v9
        v_cndmask_b32 v5, 0, v8, vcc
        v_cmp_eq_u32 vcc, 2, v9
        v_cndmask_b32 v6, 0, v8, vcc
        v_cmp_eq_u32 vcc, 3, v9
        v_cndmask_b32 v7, 0, v8, vcc
        """)
    DPPF = "row_mask:0xf bank_mask:0xf"

    if stamps:
        for i in range(1, 8):
            a(f"s_mov_b64 s[{64+2*i}:{65+2*i}], 0")
    stamp(0)
    a(f"""
    v_readfirstlane_b32 s3, v0
    s_cmp_ge_u32 s2, 256
    s_cbranch_scc1 L_exit
    v_and_b32 v0, 63, v0
    v_mov_b32 v2, 0
    s_cmp_lt_u32 s3, {(NWAVES-1)*64}
    s_cbranch_scc1 L_noz
    v_lshlrev_b32 v1, 2, v0
    ds_write_b32 v1, v2
    s_waitcnt lgkmcnt(0)
    L_noz:
    s_load_dwordx16 s[4:19], s[0:1], 0
    s_load_dwordx8 s[20:27], s[0:1], 64
    s_load_dwordx4 s[28:31], s[0:1], 96
    s_and_b32 s32, s2, 7
    s_lshr_b32 s33, s2, 3
    s_lshl_b32 s34, s32, 1
    s_lshr_b32 s35, s33, 4
    s_add_u32 s34, s34, s35
    s_and_b32 s35, s33, 15
    s_lshr_b32 s3, s3, 6
    s_cmp_ge_u32 s3, 9
    s_cbranch_scc1 L_L
    s_cmp_lg_u32 s3, 0
    s_cbranch_scc1 L_A
    """)
    a(f"""
    s_and_b32 s36, s35, 3
    s_lshr_b32 s37, s35, 2
    s_lshl_b32 s38, s34, 2
    s_add_u32 s38, s38, s37
    s_mul_i32 s39, s36, {144*8192}
    s_lshl_b32 s38, s38, 7
    s_add_u32 s39, s39, s38
    s_mul_i32 s38, s36, 288
    v_lshrrev_b32 v3, 3, v0
    v_mul_u32_u24 v1, {18*8192}, v3
    v_and_b32 v8, 7, v0
    v_lshl_add_u32 v1, v8, 4, v1
    v_mul_u32_u24 v3, 36, v3
    v_add_u32 v3, s38, v3
    s_waitcnt lgkmcnt(0)
    s_add_u32 s10, s10, s39
    s_addc_u32 s11, s11, 0
    global_load_dwordx4 v[104:107], v3, s[4:5]
    global_load_dwordx4 v[108:111], v3, s[4:5] offset:16
    global_load_dword v112, v3, s[4:5] offset:32
    global_load_dword v113, v2, s[30:31] sc1
    """)
    for t in range(18):
        a(f"global_load_dwordx4 v[{32+4*t}:{35+4*t}], v1, s[10:11]{nt}")
        if t < 17: a("v_add_u32 v1, 0x2000, v1")
    a("s_barrier")
    a("s_branch L_Q2")
    a(f"""
    L_A:
    s_lshl_b32 s36, s34, 24
    s_lshl_b32 s37, s35, 16
    s_add_u32 s36, s36, s37
    s_lshl_b32 s37, s3, 13
    s_add_u32 s36, s36, s37
    s_add_u32 s36, s36, {61440*256 + 4096 - 8192}
    v_and_b32 v1, 12, v0
    v_lshlrev_b32 v1, 6, v1
    v_and_b32 v3, 48, v0
    v_lshl_add_u32 v1, v3, 2, v1
    v_and_b32 v3, 3, v0
    v_lshl_add_u32 v1, v3, 4, v1
    v_lshlrev_b32 v3, 4, v0
    s_waitcnt lgkmcnt(0)
    s_add_u32 s6, s6, s36
    s_addc_u32 s7, s7, 0
    s_add_u32 s8, s8, s36
    s_addc_u32 s9, s9, 0
    s_barrier
    """)
    for i in range(8):
        a(f"global_load_dwordx4 v[{32+4*i}:{35+4*i}], v1, s[6:7] offset:{i*1024-4096}{nt}")
    for i in range(8):
        a(f"global_load_dwordx4 v[{64+4*i}:{67+4*i}], v3, s[8:9] offset:{i*1024-4096}{nt}")
    a(f"""
    v_mov_b32 v1, 1
    s_mov_b64 exec, 1
    ds_add_u32 v2, v1 offset:{L_CISS}
    s_mov_b64 exec, -1
    """)
    stamp(1)
    masks()
    a(f"""
    v_and_b32 v8, 4, v0
    v_lshlrev_b32 v8, 6, v8
    v_and_b32 v9, 48, v0
    v_lshl_add_u32 v8, v9, 2, v8
    v_and_b32 v9, 3, v0
    v_lshl_add_u32 v96, v9, 4, v8
    v_and_b32 v9, 8, v0
    v_and_b32 v97, 48, v0
    v_lshl_add_u32 v97, v9, 3, v97
    v_add_u32 v98, 128, v97
    v_cmp_eq_u32 vcc, 0, v9
    s_mov_b32 s41, {f2u(CSC)}
    s_mov_b32 s42, 0x01000100
    s_mov_b32 s43, 0x03020302
    s_sub_u32 s44, s3, 1
    """)
    spin("L_Aq", L_FQ, "lg", 0)
    stamp(2)
    a(f"""
    ds_read_b128 v[12:15], v96 offset:{L_Q}
    s_waitcnt lgkmcnt(0)
    """)
    for d in range(4):
        a(f"v_cndmask_b32 v{8+d}, 0, v{12+d}, vcc")
    for d in range(4):
        a(f"v_cndmask_b32_e64 v{12+d}, v{12+d}, 0, vcc")
    a("s_waitcnt vmcnt(8)")
    for m in range(4):
        a(f"v_mfma_f32_16x16x32_bf16 v[{16+4*m}:{19+4*m}], v[8:11], v[{32+8*m}:{35+8*m}], 0")
    for m in range(4):
        a(f"v_mfma_f32_16x16x32_bf16 v[{16+4*m}:{19+4*m}], v[12:15], v[{36+8*m}:{39+8*m}], v[{16+4*m}:{19+4*m}]")
    for m in range(4):
        a(f"v_mov_b32_dpp v{100+m}, v{16+4*m} quad_perm:[0,0,0,0] {DPPF}")
    for r in range(1, 4):
        for m in range(4):
            a(f"v_add_f32_dpp v{100+m}, v{16+4*m+r}, v{100+m} quad_perm:[{r},{r},{r},{r}] {DPPF}")
    a(f"""
    v_max3_f32 v104, v100, v101, v102
    v_max_f32 v104, v104, v103
    v_max_f32_dpp v104, v104, v104 row_ror:4 {DPPF}
    v_max_f32_dpp v104, v104, v104 row_ror:8 {DPPF}
    v_mov_b32 v106, v104
    v_permlane32_swap_b32 v106, v104
    v_max_f32 v104, v104, v106
    v_mul_f32 v106, s41, v104
    """)
    for m in range(4):
        a(f"v_fma_f32 v{100+m}, v{100+m}, s41, -v106")
    for m in range(4):
        a(f"v_exp_f32 v{100+m}, v{100+m}")
    a(f"""
    v_cvt_pk_bf16_f32 v107, v100, v101
    v_cvt_pk_bf16_f32 v108, v102, v103
    ds_bpermute_b32 v110, v97, v107
    ds_bpermute_b32 v111, v98, v107
    ds_bpermute_b32 v112, v97, v108
    ds_bpermute_b32 v113, v98, v108
    v_add_f32 v105, v100, v101
    v_add_f32 v106, v102, v103
    v_add_f32 v105, v105, v106
    v_add_f32_dpp v105, v105, v105 row_ror:4 {DPPF}
    v_add_f32_dpp v105, v105, v105 row_ror:8 {DPPF}
    v_mov_b32 v106, v105
    v_permlane32_swap_b32 v106, v105
    v_add_f32 v105, v105, v106
    v_and_b32 v106, 16, v0
    v_lshlrev_b32 v106, 2, v106
    s_lshl_b32 s45, s44, 3
    v_add_u32 v106, s45, v106
    ds_write_b64 v106, v[104:105] offset:{L_SW}
    s_waitcnt lgkmcnt(1)
    """)
    for v in range(8):
        m, H = v >> 1, v & 1
        x = 110 + H + 2 * (m >> 1)
        sel = "s42" if (m & 1) == 0 else "s43"
        a(f"v_perm_b32 v109, v{x}, v{x}, {sel}")
        for d in range(4):
            a(f"v_and_b32 v{32+4*v+d}, v109, v{4+d}")
    stamp(3)
    for v in range(8):
        a(f"s_waitcnt vmcnt({7-v})")
        src = "0" if v == 0 else "v[16:19]"
        a(f"v_mfma_f32_16x16x32_bf16 v[16:19], v[{32+4*v}:{35+4*v}], v[{64+4*v}:{67+4*v}], {src}")
    stamp(4)
    a(f"""
    s_lshl_b32 s45, s44, 10
    v_lshlrev_b32 v3, 4, v0
    v_add_u32 v8, s45, v3
    v_mov_b32 v1, 1
    ds_write_b128 v8, v[16:19] offset:{L_OW}
    s_mov_b64 exec, 1
    ds_add_rtn_u32 v9, v2, v1 offset:{L_CDONE}
    s_mov_b64 exec, -1
    s_waitcnt lgkmcnt(0)
    v_readfirstlane_b32 s45, v9
    s_cmp_lg_u32 s45, 7
    s_cbranch_scc1 L_fin
    v_and_b32 v8, 32, v0
    v_lshlrev_b32 v9, 1, v8
    """)
    for k in range(4):
        a(f"ds_read_b128 v[{16+4*k}:{19+4*k}], v9 offset:{L_SW+16*k}")
    for w in range(8):
        a(f"ds_read_b128 v[{32+4*w}:{35+4*w}], v3 offset:{L_OW+1024*w}")
    a(f"""
    v_lshlrev_b32 v10, 8, v8
    v_and_b32 v11, 8, v0
    v_lshl_add_u32 v10, v11, 9, v10
    v_and_b32 v11, 16, v0
    v_lshl_add_u32 v10, v11, 3, v10
    v_and_b32 v11, 7, v0
    v_lshl_add_u32 v10, v11, 4, v10
    s_lshl_b32 s45, s34, 14
    s_lshl_b32 s46, s35, 8
    s_add_u32 s45, s45, s46
    s_add_u32 s45, s45, {WS_OP}
    v_add_u32 v10, s45, v10
    v_lshlrev_b32 v11, 3, v8
    s_lshl_b32 s45, s34, 9
    s_lshl_b32 s46, s35, 4
    s_add_u32 s45, s45, s46
    s_add_u32 s45, s45, {WS_ST}
    v_add_u32 v11, s45, v11
    s_and_b32 s40, s40, 0xff
    v_mov_b32 v12, s40
    s_mov_b32 s46, 0xffffff00
    s_waitcnt lgkmcnt(8)
    v_max3_f32 v13, v16, v18, v20
    v_max3_f32 v13, v13, v22, v24
    v_max3_f32 v13, v13, v26, v28
    v_max_f32 v13, v13, v30
    v_mul_f32 v14, s41, v13
    """)
    for w in range(8):
        a(f"v_fma_f32 v{16+2*w}, v{16+2*w}, s41, -v14")
    for w in range(8):
        a(f"v_exp_f32 v{16+2*w}, v{16+2*w}")
    a("v_mul_f32 v14, v16, v17")
    for w in range(1, 8):
        a(f"v_fmac_f32 v14, v{16+2*w}, v{17+2*w}")
    a(f"""
    v_and_or_b32 v64, v13, s46, v12
    v_lshl_or_b32 v65, v13, 8, v12
    v_and_or_b32 v66, v14, s46, v12
    v_mov_b32 v67, v12
    s_waitcnt lgkmcnt(0)
    """)
    for r in range(4):
        a(f"v_mul_f32 v{68+r}, v16, v{32+r}")
    for w in range(1, 8):
        for r in range(4):
            a(f"v_fmac_f32 v{68+r}, v{16+2*w}, v{32+4*w+r}")
    for r in range(4):
        a(f"v_and_or_b32 v{68+r}, v{68+r}, s46, v12")
    a(f"""
    global_store_dwordx4 v10, v[68:71], s[30:31] sc1
    s_mov_b32 exec_lo, 1
    s_mov_b32 exec_hi, 1
    global_store_dwordx4 v11, v[64:67], s[30:31] sc1
    """)
    stamp(5)
    a("L_fin:")
    finish()

    a("L_Q2:")
    stamp(1)
    masks()
    a(f"""
    s_mov_b32 s42, 0x01000100
    s_mov_b32 s43, 0x03020302
    s_mov_b32 s46, 0xffffff00
    v_and_b32 v8, 7, v0
    v_lshlrev_b32 v8, 5, v8
    v_and_b32 v9, 16, v0
    v_add_u32 v8, v8, v9
    v_lshrrev_b32 v9, 5, v0
    v_lshl_add_u32 v8, v9, 3, v8
    s_lshl_b32 s44, s34, 12
    s_add_u32 s44, s44, {WS_QP}
    s_lshl_b32 s45, s36, 10
    s_lshl_b32 s47, s37, 8
    s_add_u32 s45, s45, s47
    s_add_u32 s45, s45, s44
    v_add_u32 v8, s45, v8
    v_lshlrev_b32 v9, 4, v0
    v_add_u32 v9, s44, v9
    s_waitcnt vmcnt(18)
    v_add_u32 v113, 1, v113
    v_and_b32 v12, 0xff, v113
    """)
    for t in range(18):
        A0 = 20 + 4 * (t & 1)
        sel = "s42" if (t & 1) == 0 else "s43"
        x = 104 + (t >> 1)
        a(f"v_perm_b32 v10, v{x}, v{x}, {sel}")
        for d in range(4):
            a(f"v_and_b32 v{A0+d}, v10, v{4+d}")
        a(f"s_waitcnt vmcnt({17-t})")
        src = "0" if t == 0 else "v[28:31]"
        a(f"v_mfma_f32_16x16x32_bf16 v[28:31], v[{A0}:{A0+3}], v[{32+4*t}:{35+4*t}], {src}")
    stamp(2)
    a(f"""
    v_permlane32_swap_b32 v28, v30
    v_permlane32_swap_b32 v29, v31
    v_add_f32_dpp v28, v30, v28 row_ror:8 {DPPF}
    v_add_f32_dpp v29, v31, v29 row_ror:8 {DPPF}
    v_and_or_b32 v28, v28, s46, v12
    v_and_or_b32 v29, v29, s46, v12
    s_mov_b32 exec_lo, 0x00ff00ff
    s_mov_b32 exec_hi, 0x00ff00ff
    global_store_dwordx2 v8, v[28:29], s[30:31] sc1
    s_mov_b64 exec, -1
    s_waitcnt vmcnt(0)
    """)
    stamp(3)
    a("s_mov_b32 s50, 0x4000")
    a("L_Qpoll:")
    a("s_sub_u32 s50, s50, 1")
    a("s_cbranch_scc1 L_exit")
    for t in range(4):
        a(f"global_load_dwordx4 v[{32+4*t}:{35+4*t}], v9, s[30:31] offset:{1024*t} sc1")
    a("v_mov_b32 v10, 0")
    for t in range(4):
        a(f"s_waitcnt vmcnt({3-t})")
        for d in range(4):
            a(f"v_bitop3_b32 v10, v{32+4*t+d}, v10, v12 bitop3:0xde")
    a(f"""
    v_and_b32 v10, 0xff, v10
    v_cmp_ne_u32 vcc, 0, v10
    s_cbranch_vccnz L_Qpoll
    """)
    for d in range(4):
        a(f"v_add_f32 v{32+d}, v{32+d}, v{36+d}")
        a(f"v_add_f32 v{40+d}, v{40+d}, v{44+d}")
    for d in range(4):
        a(f"v_add_f32 v{32+d}, v{32+d}, v{40+d}")
    a(f"""
    v_cvt_pk_bf16_f32 v32, v32, v33
    v_cvt_pk_bf16_f32 v33, v34, v35
    v_lshlrev_b32 v8, 3, v0
    v_or_b32 v10, 0x100, v12
    ds_write_b64 v8, v[32:33] offset:{L_Q}
    ds_write_b32 v2, v113 offset:32
    ds_write_b32 v2, v10 offset:{L_FQ}
    """)
    stamp(4)
    a(f"""
    s_cmp_lt_u32 s33, 18
    s_cbranch_scc1 L_fin
    s_cmp_ge_u32 s33, 26
    s_cbranch_scc1 L_fin
    ; ---- o consumer ----
    s_lshl_b32 s36, s32, 3
    s_add_u32 s36, s36, s33
    s_sub_u32 s36, s36, 18
    s_lshl_b32 s37, s36, 12
    s_add_u32 s37, s37, {WS_OP}
    v_lshlrev_b32 v9, 4, v0
    v_add_u32 v9, s37, v9
    s_lshr_b32 s37, s36, 1
    s_lshl_b32 s37, s37, 8
    s_add_u32 s37, s37, {WS_ST}
    v_and_b32 v8, 15, v0
    v_lshlrev_b32 v8, 4, v8
    v_add_u32 v8, s37, v8
    v_lshrrev_b32 v14, 4, v0
    v_lshlrev_b32 v14, 2, v14
    v_add_u32 v15, 16, v14
    v_add_u32 v16, 32, v14
    v_add_u32 v17, 48, v14
    v_and_b32 v18, 7, v0
    v_lshlrev_b32 v18, 5, v18
    v_and_b32 v19, 8, v0
    v_lshl_add_u32 v18, v19, 1, v18
    v_and_b32 v19, 16, v0
    v_lshrrev_b32 v19, 1, v19
    v_add_u32 v18, v18, v19
    v_lshrrev_b32 v19, 5, v0
    v_lshl_add_u32 v18, v19, 2, v18
    s_mov_b32 s41, {f2u(CSC)}
    s_mov_b32 s42, 0x07060501
    """)
    spin("L_Qg", L_CDONE, "ge", 8)
    a("s_mov_b32 s50, 0x4000")
    a("L_Opoll:")
    a("s_sub_u32 s50, s50, 1")
    a("s_cbranch_scc1 L_exit")
    a(f"global_load_dwordx4 v[48:51], v8, s[30:31] sc1")
    for t in range(4):
        a(f"global_load_dwordx4 v[{32+4*t}:{35+4*t}], v9, s[30:31] offset:{1024*t} sc1")
    a("v_mov_b32 v10, 0")
    a("s_waitcnt vmcnt(4)")
    for d in range(4):
        a(f"v_bitop3_b32 v10, v{48+d}, v10, v12 bitop3:0xde")
    a(f"""
    v_perm_b32 v48, v48, v49, s42
    v_max_f32_dpp v20, v48, v48 row_ror:1 {DPPF}
    v_max_f32_dpp v20, v20, v20 row_ror:2 {DPPF}
    v_max_f32_dpp v20, v20, v20 row_ror:4 {DPPF}
    v_max_f32_dpp v20, v20, v20 row_ror:8 {DPPF}
    v_sub_f32 v20, v48, v20
    v_mul_f32 v20, s41, v20
    v_exp_f32 v20, v20
    v_mul_f32 v21, v20, v50
    v_add_f32_dpp v21, v21, v21 row_ror:1 {DPPF}
    v_add_f32_dpp v21, v21, v21 row_ror:2 {DPPF}
    v_add_f32_dpp v21, v21, v21 row_ror:4 {DPPF}
    v_add_f32_dpp v21, v21, v21 row_ror:8 {DPPF}
    v_rcp_f32 v21, v21
    v_mul_f32 v20, v20, v21
    ds_bpermute_b32 v24, v14, v20
    ds_bpermute_b32 v25, v15, v20
    ds_bpermute_b32 v26, v16, v20
    ds_bpermute_b32 v27, v17, v20
    """)
    for t in range(4):
        a(f"s_waitcnt vmcnt({3-t})")
        for d in range(4):
            a(f"v_bitop3_b32 v10, v{32+4*t+d}, v10, v12 bitop3:0xde")
    a(f"""
    v_and_b32 v10, 0xff, v10
    v_cmp_ne_u32 vcc, 0, v10
    s_waitcnt lgkmcnt(0)
    s_cbranch_vccnz L_Opoll
    """)
    stamp(5)
    for d in range(4):
        a(f"v_mul_f32 v{32+d}, v24, v{32+d}")
    for t in range(1, 4):
        for d in range(4):
            a(f"v_fmac_f32 v{32+d}, v{24+t}, v{32+4*t+d}")
    a(f"""
    v_permlane32_swap_b32 v32, v33
    v_permlane32_swap_b32 v34, v35
    v_add_f32 v32, v32, v33
    v_add_f32 v34, v34, v35
    v_permlane16_swap_b32 v32, v34
    v_add_f32 v32, v32, v34
    v_cvt_pk_bf16_f32 v32, v32, v32
    v_mov_b32 v10, 1
    ds_write_b32 v18, v32 offset:{L_OB}
    ds_write_b32 v2, v10 offset:{L_FO}
    """)
    stamp(6)
    finish()

    a(f"""
    L_L:
    s_sub_u32 s44, s3, 9
    s_getpc_b64 s[48:49]
    L_pc:
    s_sub_u32 s48, s48, L_pc - {KNAME}
    s_subb_u32 s49, s49, 0
    s_mul_i32 s45, s44, 3328
    v_lshlrev_b32 v3, 6, v0
    v_add_u32 v3, s45, v3
    global_load_dword v32, v3, s[48:49]
    s_barrier
    s_cmp_ge_u32 s33, 26
    s_cbranch_scc1 L_R
    """)
    masks()
    a(f"""
    v_lshrrev_b32 v8, 3, v0
    v_mul_u32_u24 v1, 1152, v8
    v_and_b32 v9, 7, v0
    v_lshl_add_u32 v1, v9, 4, v1
    s_mul_i32 s45, s44, 384
    v_add_u32 v1, s45, v1
    v_and_b32 v9, 3, v0
    v_lshl_add_u32 v30, v9, 3, v8
    v_lshlrev_b32 v30, 2, v30
    v_bfe_u32 v8, v0, 2, 1
    v_bfe_u32 v10, v0, 4, 1
    v_lshl_add_u32 v8, v10, 1, v8
    v_mul_u32_u24 v31, 13312, v8
    v_lshl_add_u32 v31, v9, 4, v31
    s_mul_i32 s47, s44, {12*13312}
    s_add_u32 s47, s47, {WS_FP}
    s_mov_b32 s46, 0xffffff00
    s_cmp_ge_u32 s33, 18
    s_cbranch_scc1 L_W
    ; ---- FFN ----
    s_mul_i32 s36, s32, 18
    s_add_u32 s36, s36, s33
    s_lshl_b32 s37, s36, 6
    s_add_u32 s47, s47, s37
    s_add_u32 s47, s47, {64*64}
    s_mul_i32 s38, s44, {192*9216}
    s_add_u32 s38, s38, s37
    s_mul_i32 s39, s36, {32*1152}
    v_lshrrev_b32 v8, 2, v0
    v_mul_u32_u24 v3, {12*9216}, v8
    v_lshl_add_u32 v3, v9, 4, v3
    v_mul_u32_u24 v8, 24, v8
    s_mul_i32 s45, s44, 384
    v_add_u32 v8, s45, v8
    v_lshrrev_b32 v9, 1, v30
    v_add_u32 v9, s37, v9
    s_waitcnt lgkmcnt(0)
    s_add_u32 s16, s16, s38
    s_addc_u32 s17, s17, 0
    s_add_u32 s20, s20, s39
    s_addc_u32 s21, s21, 0
    global_load_dwordx4 v[24:27], v8, s[4:5]
    global_load_dwordx2 v[28:29], v8, s[4:5] offset:16
    global_load_ushort v14, v9, s[18:19]
    """)
    spin("L_Fi", L_CISS, "ge", 8, vreg="v10")
    stamp(1)
    for t in range(12):
        a(f"global_load_dwordx4 v[{32+4*t}:{35+4*t}], v3, s[16:17]{nt}")
        if t < 11: a("v_add_u32 v3, 9216, v3")
    for rg in range(4):
        for k in range(3):
            a(f"global_load_dwordx4 v[{80+12*rg+4*k}:{83+12*rg+4*k}], v1, s[20:21] offset:{128*k}{nt}")
        if rg < 3: a("v_add_u32 v1, 9216, v1")
    stamp(2)
    a(f"""
    s_mov_b32 s42, 0x05040100
    s_mov_b32 s43, 0x07060302
    """)
    for e in range(8):
        a(f"v_mov_b32 v{16+e}, 0")
    for p in range(6):
        a(f"s_waitcnt vmcnt({22-2*p})")
        r0, r1 = 32 + 8 * p, 36 + 8 * p
        for d in range(4):
            a(f"v_perm_b32 v{8+d}, v{r1+d}, v{r0+d}, s42")
        for d in range(4):
            a(f"v_perm_b32 v{r0+d}, v{r1+d}, v{r0+d}, s43")
        for d in range(4):
            a(f"v_dot2c_f32_bf16 v{16+2*d}, v{8+d}, v{24+p}")
        for d in range(4):
            a(f"v_dot2c_f32_bf16 v{17+2*d}, v{r0+d}, v{24+p}")
    stamp(3)
    a(f"""
    v_permlane32_swap_b32 v16, v17
    v_permlane32_swap_b32 v18, v19
    v_permlane32_swap_b32 v20, v21
    v_permlane32_swap_b32 v22, v23
    v_add_f32 v16, v16, v17
    v_add_f32 v18, v18, v19
    v_add_f32 v20, v20, v21
    v_add_f32 v22, v22, v23
    v_permlane16_swap_b32 v16, v18
    v_permlane16_swap_b32 v20, v22
    v_add_f32 v16, v16, v18
    v_add_f32 v20, v20, v22
    v_add_f32_dpp v16, v16, v16 row_ror:4 {DPPF}
    v_add_f32_dpp v20, v20, v20 row_ror:4 {DPPF}
    v_and_b32 v8, 3, v0
    v_lshlrev_b32 v8, 5, v8
    v_add_f32_dpp v16, v16, v16 row_ror:8 {DPPF}
    v_add_f32_dpp v20, v20, v20 row_ror:8 {DPPF}
    v_bfe_u32 v9, v0, 4, 1
    v_lshl_add_u32 v8, v9, 3, v8
    v_lshrrev_b32 v9, 5, v0
    v_lshl_add_u32 v8, v9, 2, v8
    s_lshl_b32 s45, s44, 7
    v_add_u32 v8, s45, v8
    v_mov_b32 v9, 1
    ds_write_b32 v8, v16 offset:{L_HP}
    ds_write_b32 v8, v20 offset:{L_HP+16}
    s_mov_b64 exec, 1
    ds_add_u32 v2, v9 offset:{L_CH}
    s_mov_b64 exec, -1
    """)
    spin("L_Fq", L_FQ, "lg", 0, vreg="v12")
    spin("L_Fh", L_CH, "ge", 3, vreg="v10")
    GC1 = -2.0 * math.log2(math.e) * math.sqrt(2.0 / math.pi)
    GC3 = GC1 * 0.044715
    a(f"""
    ds_read_b32 v8, v30 offset:{L_HP}
    ds_read_b32 v9, v30 offset:{L_HP+128}
    ds_read_b32 v10, v30 offset:{L_HP+256}
    v_lshlrev_b32 v14, 16, v14
    s_mov_b32 s42, {f2u(GC3)}
    v_mov_b32 v11, {f2u(GC1)}
    s_waitcnt lgkmcnt(0)
    v_add_f32 v8, v8, v9
    v_add_f32 v8, v8, v10
    v_cvt_pk_bf16_f32 v8, v8, v8
    v_and_b32 v8, 0xffff0000, v8
    v_add_f32 v8, v8, v14
    v_cvt_pk_bf16_f32 v8, v8, v8
    v_and_b32 v8, 0xffff0000, v8
    v_mul_f32 v9, v8, v8
    v_fma_f32 v9, v9, s42, v11
    v_mul_f32 v9, v9, v8
    v_exp_f32 v9, v9
    v_add_f32 v9, 1.0, v9
    v_rcp_f32 v9, v9
    v_mul_f32 v8, v8, v9
    v_cvt_pk_bf16_f32 v29, v8, v8
    """)
    for i in range(12):
        a(f"v_mov_b32 v{16+i}, 0")
    stamp(4)
    a("s_branch L_S2")
    a(f"""
    L_W:
    s_lshl_b32 s36, s32, 3
    s_add_u32 s36, s36, s33
    s_sub_u32 s36, s36, 18
    s_lshl_b32 s37, s36, 6
    s_add_u32 s47, s47, s37
    s_mul_i32 s39, s36, {64*1152}
    s_waitcnt lgkmcnt(0)
    s_add_u32 s12, s12, s39
    s_addc_u32 s13, s13, 0
    """)
    spin("L_Wi", L_CISS, "ge", 8, vreg="v10")
    stamp(1)
    for rg in range(8):
        for k in range(3):
            a(f"global_load_dwordx4 v[{32+12*rg+4*k}:{35+12*rg+4*k}], v1, s[12:13] offset:{128*k}{nt}")
        if rg < 7: a("v_add_u32 v1, 9216, v1")
    stamp(2)
    for i in range(12):
        a(f"v_mov_b32 v{16+i}, 0")
    spin("L_Wo", L_FO, "lg", 0, vreg="v10")
    a(f"""
    ds_read_b32 v28, v30 offset:{L_OB}
    ds_read_b32 v29, v30 offset:{L_OB+128}
    ds_read_b32 v12, v2 offset:{L_FQ}
    s_waitcnt lgkmcnt(0)
    """)
    stamp(4)
    def stage(rg):
        h = 28 + (rg >> 2)
        q = rg & 3
        A0 = 8 if (rg & 1) == 0 else 0
        return h, q
    for rg in range(8):
        if rg == 4:
            a("L_S2:")
            a("s_nop 1")
        h = 28 + (rg >> 2); q = rg & 3
        for d in range(4):
            a(f"v_and_b32_dpp v{8+d}, v{h}, v{4+d} quad_perm:[{q},{q},{q},{q}] {DPPF}")
        for k in range(3):
            a(f"s_waitcnt vmcnt({23-3*rg-k})")
            a(f"v_mfma_f32_16x16x32_bf16 v[{16+4*k}:{19+4*k}], v[8:11], v[{32+12*rg+4*k}:{35+12*rg+4*k}], v[{16+4*k}:{19+4*k}]")
    stamp(5)
    a(f"""
    v_and_b32 v12, 0xff, v12
    v_add_u32 v31, s47, v31
    v_lshrrev_b32 v8, 5, v0
    v_mul_u32_u24 v9, {4*13312}, v8
    v_add_u32 v9, v31, v9
    v_lshl_add_u32 v10, v8, 3, v31
    v_add_u32 v10, {8*13312}, v10
    """)
    for r in range(4):
        a(f"v_permlane32_swap_b32 v{16+r}, v{20+r}")
    a("v_permlane32_swap_b32 v24, v26")
    a("v_permlane32_swap_b32 v25, v27")
    for r in range(4):
        a(f"v_add_f32_dpp v{16+r}, v{20+r}, v{16+r} row_ror:8 {DPPF}")
    a(f"v_add_f32_dpp v24, v26, v24 row_ror:8 {DPPF}")
    a(f"v_add_f32_dpp v25, v27, v25 row_ror:8 {DPPF}")
    for r in (16, 17, 18, 19, 24, 25):
        a(f"v_and_or_b32 v{r}, v{r}, s46, v12")
    a(f"""
    s_mov_b32 exec_lo, 0x00ff00ff
    s_mov_b32 exec_hi, 0x00ff00ff
    global_store_dwordx4 v9, v[16:19], s[30:31] sc1
    global_store_dwordx2 v10, v[24:25], s[30:31] sc1
    """)
    stamp(6)
    finish()

    a(f"""
    L_R:
    s_cmp_lg_u32 s44, 0
    s_cbranch_scc1 L_fin
    s_sub_u32 s36, s33, 26
    s_lshl_b32 s36, s36, 3
    s_add_u32 s36, s36, s32
    s_cmp_ge_u32 s36, 36
    s_cbranch_scc1 L_fin
    s_lshr_b32 s37, s36, 2
    s_lshl_b32 s37, s37, 6
    s_and_b32 s38, s36, 1
    s_lshl_b32 s38, s38, 5
    s_add_u32 s37, s37, s38
    s_and_b32 s38, s36, 2
    s_lshl_b32 s38, s38, 1
    s_add_u32 s37, s37, s38
    v_and_b32 v8, 3, v0
    v_lshlrev_b32 v8, 3, v8
    v_lshrrev_b32 v9, 4, v0
    v_add3_u32 v8, v8, v9, s37
    v_lshlrev_b32 v8, 1, v8
    v_lshlrev_b32 v3, 2, v0
    v_mov_b32 v20, 0
    v_mov_b32 v25, 0
    s_waitcnt lgkmcnt(0)
    global_load_ushort v9, v8, s[22:23]
    """)
    for i in range(4):
        a(f"global_load_dword v{16+i}, v3, s[4:5] offset:{256*i}")
        a(f"global_load_dword v{21+i}, v3, s[24:25] offset:{256*i}")
    a(f"""
    s_mov_b32 exec_hi, 0
    global_load_dword v20, v3, s[4:5] offset:1024
    global_load_dword v25, v3, s[24:25] offset:1024
    s_mov_b32 exec_hi, -1
    s_mul_i32 s38, s36, 13312
    s_add_u32 s38, s38, {WS_FP + 4096}
    v_lshlrev_b32 v1, 4, v0
    v_add_u32 v1, s38, v1
    v_add_u32 v4, 0x2000, v1
    v_mov_b32 v10, 0
    v_mov_b32 v11, 0x3f803f80
    s_waitcnt vmcnt(0)
    """)
    for i in range(5):
        a(f"""
        v_lshlrev_b32 v12, 16, v{16+i}
        v_and_b32 v13, 0xffff0000, v{16+i}
        v_lshlrev_b32 v14, 16, v{21+i}
        v_and_b32 v15, 0xffff0000, v{21+i}
        v_mul_f32 v12, v12, v14
        v_mul_f32 v13, v13, v15
        v_cvt_pk_bf16_f32 v12, v12, v13
        v_dot2c_f32_bf16 v10, v12, v11
        """)
    a(f"""
    v_add_f32_dpp v10, v10, v10 row_ror:1 {DPPF}
    v_add_f32_dpp v10, v10, v10 row_ror:2 {DPPF}
    v_add_f32_dpp v10, v10, v10 row_ror:4 {DPPF}
    v_add_f32_dpp v10, v10, v10 row_ror:8 {DPPF}
    v_mov_b32 v11, v10
    v_permlane16_swap_b32 v11, v10
    v_add_f32 v10, v10, v11
    v_mov_b32 v11, v10
    v_permlane32_swap_b32 v11, v10
    v_add_f32 v10, v10, v11
    v_cvt_pk_bf16_f32 v10, v10, v10
    v_and_b32 v10, 0xffff0000, v10
    v_mul_f32 v10, {f2u(-math.log2(math.e))}, v10
    v_exp_f32 v10, v10
    v_add_f32 v10, 1.0, v10
    v_rcp_f32 v10, v10
    v_cvt_pk_bf16_f32 v10, v10, v10
    v_and_b32 v5, 0xffff0000, v10
    v_sub_f32 v6, 1.0, v5
    v_cvt_pk_bf16_f32 v6, v6, v6
    v_and_b32 v6, 0xffff0000, v6
    v_lshlrev_b32 v7, 16, v9
    """)
    stamp(1)
    spin("L_Rg", L_CDONE, "ge", 8, vreg="v10")
    a(f"""
    ds_read_b32 v12, v2 offset:{L_FQ}
    ds_read_b32 v13, v2 offset:32
    s_waitcnt lgkmcnt(0)
    v_and_b32 v12, 0xff, v12
    """)
    stamp(2)
    a("s_mov_b32 s50, 0x4000")
    a("L_Rpoll:")
    a("s_sub_u32 s50, s50, 1")
    a("s_cbranch_scc1 L_exit")
    for t in range(13):
        base, off = ("v1", 1024 * t - 4096) if t < 8 else ("v4", 1024 * (t - 8) - 4096)
        a(f"global_load_dwordx4 v[{32+4*t}:{35+4*t}], {base}, s[30:31] offset:{off} sc1")
    a("v_mov_b32 v10, 0")
    for t in range(13):
        a(f"s_waitcnt vmcnt({12-t})")
        for d in range(4):
            a(f"v_bitop3_b32 v10, v{32+4*t+d}, v10, v12 bitop3:0xde")
        if t not in (0, 4):
            acc = 32 if t < 4 else 48
            for d in range(4):
                a(f"v_add_f32 v{acc+d}, v{acc+d}, v{32+4*t+d}")
    a(f"""
    v_and_b32 v10, 0xff, v10
    v_cmp_ne_u32 vcc, 0, v10
    s_cbranch_vccnz L_Rpoll
    """)
    stamp(3)
    for e in range(4):
        a(f"v_permlane32_swap_b32 v{32+e}, v{48+e}")
    for e in range(4):
        a(f"v_add_f32 v{32+e}, v{32+e}, v{48+e}")
    a(f"""
    v_permlane16_swap_b32 v32, v33
    v_permlane16_swap_b32 v34, v35
    v_add_f32 v32, v32, v33
    v_add_f32 v34, v34, v35
    v_add_f32_dpp v32, v32, v32 row_ror:4 {DPPF}
    v_add_f32_dpp v34, v34, v34 row_ror:4 {DPPF}
    v_add_f32_dpp v32, v32, v32 row_ror:8 {DPPF}
    v_add_f32_dpp v34, v34, v34 row_ror:8 {DPPF}
    v_permlane32_swap_b32 v32, v34
    v_cvt_pk_bf16_f32 v32, v32, v34
    v_and_b32 v34, 0xffff0000, v32
    v_lshlrev_b32 v32, 16, v32
    v_add_f32 v34, v34, v7
    v_cvt_pk_bf16_f32 v34, v34, v34
    v_and_b32 v34, 0xffff0000, v34
    v_mul_f32 v32, v32, v5
    v_mul_f32 v34, v34, v6
    v_cvt_pk_bf16_f32 v32, v32, v34
    v_and_b32 v34, 0xffff0000, v32
    v_lshlrev_b32 v32, 16, v32
    v_add_f32 v32, v32, v34
    v_cvt_pk_bf16_f32 v32, v32, v32
    s_mov_b32 exec_lo, 0x000f000f
    s_mov_b32 exec_hi, 0x000f000f
    global_store_short v8, v32, s[26:27]
    s_cmp_lg_u32 s36, 0
    s_cbranch_scc1 L_fin
    s_mov_b64 exec, 1
    global_store_dword v2, v13, s[30:31] sc1
    """)
    finish()
    if stamps:
        a(f"""
        L_stamp_out:
        s_memrealtime s[78:79]
        s_mov_b64 exec, 1
        s_waitcnt lgkmcnt(0)
        s_lshl_b32 s60, s2, 4
        s_add_u32 s60, s60, s3
        s_lshl_b32 s60, s60, 5
        s_add_u32 s60, s60, {WS_DBG}
        v_mov_b32 v1, s60
        """)
        for i in range(8):
            a(f"v_mov_b32 v{120+i}, s{64+2*i}")
        a("""
        global_store_dwordx4 v1, v[120:123], s[30:31]
        global_store_dwordx4 v1, v[124:127], s[30:31] offset:16
        """)
    a("L_exit:")
    a("s_endpgm")
    a.raw("L_codeend:")
    a.raw(f".if (L_codeend - {KNAME}) > 10752")
    a.raw(".error \"code too long for the prefetch\"")
    a.raw(".endif")
    a.raw(f".fill (10752 - (L_codeend - {KNAME})) / 4, 4, 0xbf800000")
    a.raw('.section .rodata,"a"')
    a.raw(".p2align 6")
    a.raw(f".amdhsa_kernel {KNAME}")
    a.raw("  .amdhsa_next_free_vgpr 128")
    a.raw("  .amdhsa_next_free_sgpr 96")
    a.raw("  .amdhsa_accum_offset 128")
    a.raw("  .amdhsa_group_segment_fixed_size 0")
    a.raw("  .amdhsa_kernarg_size 112")
    a.raw("  .amdhsa_user_sgpr_count 2")
    a.raw("  .amdhsa_user_sgpr_kernarg_segment_ptr 1")
    a.raw("  .amdhsa_system_sgpr_workgroup_id_x 1")
    a.raw(".end_amdhsa_kernel")
    return a.text()

if __name__ == "__main__":
    open('k2.s', 'w').write(gen())
    open('k2_st.s', 'w').write(gen(stamps=True))
```

```python
import sys, math, struct
from asmlib import Asm
KNAME = "gated_mix__sliding_block_cached__dense_activation_gelu__decode_kernel"

WS_QP = 0x1000
WS_ST = 0x18000
WS_OP = 0x20000
WS_HP = 0x60000
WS_FP = 0x90000
WS_DBG = 0x200000
L_TAU, L_FQ, L_CSC, L_CS1, L_FV, L_ENEW, L_FP, L_CPV = 0, 4, 8, 12, 16, 20, 24, 28
L_VEC = 64
L_PROG = 256
L_Q = 512
L_S = 1024
L_OW = 3072
L_K = 6144
L_V = L_K + 65536
LDS_BYTES = L_V + 65536
NWAVES = 7
def f2u(f): return struct.unpack('<I', struct.pack('<f', f))[0]
CSC = (128 ** -0.5) * math.log2(math.e)
DPPF = "row_mask:0xf bank_mask:0xf"
CODE_PF = 12672

def gen(stamps=False, nt=" nt", W=24, rotm=3, qdelay=12, W2=None, exp='', shift=1, kv='chunk'):
    W2 = W2 or W
    a = Asm()
    hdr = open('gated_mix__sliding_block_cached__dense_activation_gelu__decode.s.ref').read().split('\n')
    for l in hdr:
        if l.startswith('; @launch'): break
        a.raw(l)
    a.raw(f"; @launch grid=(256,1,1) block=({NWAVES*64},1,1) lds={LDS_BYTES}")
    a.raw('.amdgcn_target "amdgcn-amd-amdhsa--gfx950"')
    a.raw(".text")
    a.raw(f".globl {KNAME}")
    a.raw(".p2align 8")
    a.raw(f".type {KNAME},@function")
    a.raw(f"{KNAME}:")
    def stamp(i):
        if stamps:
            a(f"s_memrealtime s[{64+2*i}:{65+2*i}]")
    def finish():
        a("s_branch L_stamp_out" if stamps else "s_endpgm")
    def spin(name, off, cmpop, val, sreg="s40", vreg="v3", sleep=1):
        a(f"""
        s_mov_b32 s50, 0x40000
        {name}:
        ds_read_b32 {vreg}, v2 offset:{off}
        s_waitcnt lgkmcnt(0)
        v_readfirstlane_b32 {sreg}, {vreg}
        s_cmp_{cmpop} {sreg}, {val}
        s_cbranch_scc1 {name}_done
        {f"s_sleep {sleep}" if sleep else ""}
        s_sub_u32 s50, s50, 1
        s_cbranch_scc0 {name}
        s_endpgm
        {name}_done:
        """)
    def masks():
        a("""
        v_and_b32 v8, 1, v0
        v_lshlrev_b32 v8, 4, v8
        v_mov_b32 v9, 0xffff
        v_lshlrev_b32 v8, v8, v9
        v_bfe_u32 v9, v0, 1, 2
        v_cmp_eq_u32 vcc, 0, v9
        v_cmp_eq_u32 s[52:53], 1, v9
        v_cmp_eq_u32 s[54:55], 2, v9
        v_cmp_eq_u32 s[56:57], 3, v9
        v_cndmask_b32 v4, 0, v8, vcc
        v_cndmask_b32 v5, 0, v8, s[52:53]
        v_cndmask_b32 v6, 0, v8, s[54:55]
        v_cndmask_b32 v7, 0, v8, s[56:57]
        """)
    def lds_inc(off, vone="v3"):
        a(f"""
        v_mov_b32 {vone}, 1
        s_mov_b64 exec, 1
        ds_add_u32 v2, {vone} offset:{off}
        s_mov_b64 exec, -1
        """)
    def pollhead(name):
        a(f"""
        s_mov_b32 s50, 0x4000
        {name}:
        s_sub_u32 s50, s50, 1
        s_cbranch_scc1 L_exit
        """)

    stamp(0)
    a(f"""
    s_load_dwordx16 s[4:19], s[0:1], 0
    s_load_dwordx8 s[20:27], s[0:1], 64
    s_load_dwordx4 s[28:31], s[0:1], 96
    v_readfirstlane_b32 s3, v0
    s_cmpk_ge_u32 s2, 256
    s_cbranch_scc1 L_exit
    s_and_b32 s32, s2, 7
    s_lshr_b32 s33, s2, 3
    s_lshr_b32 s35, s33, 4
    s_lshl1_add_u32 s34, s32, s35
    s_add_u32 s51, s32, {shift}
    s_and_b32 s51, s51, 7
    s_lshl1_add_u32 s61, s51, s35
    s_and_b32 s35, s33, 15
    v_lshlrev_b32 v3, 5, v0
    v_and_b32 v0, 63, v0
    s_and_b32 s36, s35, 3
    s_lshr_b32 s37, s35, 2
    s_cmp_lg_u32 s3, 0
    s_cbranch_scc1 L_other0
    s_lshl2_add_u32 s38, s61, s37
    s_mul_i32 s39, s36, {144*64}
    s_add_u32 s39, s39, s38
    s_lshl_b32 s39, s39, 7
    v_lshrrev_b32 v4, 3, v0
    v_mul_u32_u24 v1, {18*8192}, v4
    v_and_b32 v5, 7, v0
    v_lshlrev_b32 v5, 4, v5
    v_add_u32 v1, v1, v5
    s_mov_b32 m0, {L_V}
    s_movk_i32 s40, 17
    s_movk_i32 s41, 0x2000
    s_waitcnt lgkmcnt(0)
    s_add_u32 s10, s10, s39
    s_addc_u32 s11, s11, 0
    L_ldq:
    global_load_lds_dwordx4 v1, s[10:11]{nt}
    v_add_u32 v1, s41, v1
    s_addk_i32 m0, 0x400
    s_sub_u32 s40, s40, 1
    s_cbranch_scc0 L_ldq
    s_branch L_ld2
    L_other0:
    s_getpc_b64 s[58:59]
    L_pc:
    global_load_dword v119, v3, s[58:59] offset:-1984
    s_branch L_other
    """)
    a.raw(f".fill (256 - (. - {KNAME})) / 4, 4, 0xbf800000")
    a("L_other:")
    if stamps:
        for i in range(1, 8):
            a(f"s_mov_b64 s[{64+2*i}:{65+2*i}], 0")
    a(f"""
    v_mov_b32 v2, 0
    s_lshr_b32 s3, s3, 6
    s_cmp_lg_u32 s3, {NWAVES-1}
    s_cbranch_scc1 L_noz
    v_lshlrev_b32 v1, 3, v0
    v_mov_b32 v3, 0
    ds_write_b64 v1, v[2:3]
    s_waitcnt lgkmcnt(0)
    L_noz:
    s_barrier
    {"s_waitcnt lgkmcnt(0)" if 'L' in exp else ""}
    {"s_branch L_fin" if 'L' in exp else ""}
    s_cmp_lt_u32 s33, 27
    s_cselect_b32 s48, 42, 18
    s_cmp_ge_u32 s3, 3
    s_cbranch_scc1 L_S
    s_cmp_eq_u32 s3, 1
    s_cbranch_scc1 L_Q
    s_branch L_L1
    """)
    if stamps:
        pass
    def prog():
        a(f"""
        v_mov_b32 v6, s42
        ds_write_b32 v7, v6 offset:{L_PROG}
        """)
    a(f"""
    L_ld2:
    {chr(10).join(f"s_mov_b64 s[{64+2*i}:{65+2*i}], 0" for i in range(1, 8)) if stamps else ""}
    s_setprio 3
    v_mov_b32 v2, 0
    v_lshlrev_b32 v7, 2, v0
    s_movk_i32 s42, {18 - (W - 1)}
    s_barrier
    """)
    stamp(1)
    a(f"""
    s_cmp_ge_u32 s33, 27
    s_cbranch_scc1 L_ldk0
    s_mul_i32 s38, s33, 57
    s_lshr_b32 s38, s38, 9
    s_mul_i32 s39, s38, 9
    s_sub_u32 s39, s33, s39
    s_mul_i32 s39, s39, {64*9216}
    s_mul_i32 s38, s38, 384
    s_add_u32 s39, s39, s38
    s_mul_i32 s38, s32, 1152
    s_add_u32 s39, s39, s38
    s_add_u32 s16, s16, s39
    s_addc_u32 s17, s17, 0
    v_mul_u32_u24 v1, 9216, v4
    v_add_u32 v1, v1, v5
    s_movk_i32 s40, 7
    s_mov_b32 s41, {8*9216}
    L_ldw:
    s_waitcnt vmcnt({W-1})
    global_load_lds_dwordx4 v1, s[16:17]{nt}
    s_addk_i32 m0, 896
    s_waitcnt vmcnt({W-1})
    global_load_lds_dwordx4 v1, s[16:17] offset:128{nt}
    s_addk_i32 m0, 896
    s_addk_i32 s42, 2
    s_waitcnt vmcnt({W-1})
    global_load_lds_dwordx4 v1, s[16:17] offset:256{nt}
    """)
    prog()
    a(f"""
    s_addk_i32 s42, 1
    s_addk_i32 m0, 1280
    v_add_u32 v1, s41, v1
    s_sub_u32 s40, s40, 1
    s_cbranch_scc0 L_ldw
    L_ldk0:
    s_lshl_b32 s38, s34, 24
    {"s_lshl_b32 s39, s35, 16" if kv == 'chunk' else ""}
    {"s_add_u32 s38, s38, s39" if kv == 'chunk' else ""}
    s_add_u32 s38, s38, {61440*256}
    s_add_u32 s6, s6, s38
    s_addc_u32 s7, s7, 0
    s_add_u32 s8, s8, s38
    s_addc_u32 s9, s9, 0
    {f"s_mul_i32 s43, s2, {rotm*4096}" if kv == 'chunk' else "s_lshl_b32 s43, s35, 10" if kv == 'i1' else "s_lshl_b32 s43, s35, 12"}
    s_mov_b32 s45, 0
    v_and_b32 v8, 12, v0
    v_lshlrev_b32 v8, 6, v8
    v_and_b32 v9, 48, v0
    v_lshl_add_u32 v8, v9, 2, v8
    v_and_b32 v9, 3, v0
    v_lshl_add_u32 v8, v9, 4, v8
    v_lshlrev_b32 v9, 4, v0
    s_mov_b32 m0, {L_K}
    s_movk_i32 s40, 15
    """)
    def quad(name, vlane, base, w, rot=True):
        a(f"{name}:")
        if rot and kv == 'chunk':
            a(f"""
            s_and_b32 s43, s43, 0xffff
            v_add_u32 v1, s43, {vlane}
            """)
        if rot and kv == 'i4':
            a(f"""
            s_and_b32 s43, s43, 0xffff
            s_and_b32 s45, s45, 0xfffff
            s_add_u32 s46, s43, s45
            v_add_u32 v1, s46, {vlane}
            s_add_u32 s45, s45, 0x10000
            """)
        for k in range(4):
            if rot and kv == 'i1':
                a(f"""
                s_and_b32 s43, s43, 0x3fff
                s_and_b32 s45, s45, 0xfffff
                s_add_u32 s46, s43, s45
                v_add_u32 v1, s46, {vlane}
                s_addk_i32 s43, 0x400
                s_add_u32 s45, s45, 0x4000
                """)
                a(f"s_waitcnt vmcnt({w-1})")
                a(f"global_load_lds_dwordx4 v1, {base}{nt}")
                a("s_addk_i32 m0, 0x400")
            else:
                a(f"s_waitcnt vmcnt({w-1})")
                a(f"global_load_lds_dwordx4 v1, {base} offset:{1024*k}{nt}")
            if k == 2: a("s_addk_i32 s42, 3")
        prog()
        a("s_addk_i32 s42, 1")
        if not (rot and kv == 'i1'):
            a("s_addk_i32 m0, 0x1000")
            if rot:
                a("s_addk_i32 s43, 0x1000")
            else:
                a("v_add_u32 v1, 0x1000, v1")
        a(f"""
        s_sub_u32 s40, s40, 1
        s_cbranch_scc0 {name}
        """)
    quad("L_ldk", "v8", "s[6:7]", W)
    stamp(2)
    if 'L' not in exp: spin("L_ldc1", L_CS1, "ge_u32", 2, sreg="s44", vreg="v3", sleep=0)
    a("s_movk_i32 s40, 15")
    quad("L_ldv", "v9", "s[8:9]", W)
    stamp(3)
    a(f"""
    s_lshl_b32 s38, s51, 4
    s_add_u32 s38, s38, s35
    s_cmp_ge_u32 s33, 16
    s_cselect_b32 s12, s20, s12
    s_cselect_b32 s13, s21, s13
    s_cselect_b32 s39, {36*1152}, {32*1152//1}
    s_cselect_b32 s40, 9, 8
    s_mul_i32 s38, s38, s39
    s_add_u32 s12, s12, s38
    s_addc_u32 s13, s13, 0
    v_mov_b32 v1, v9
    s_mov_b32 m0, {L_K}
    """.replace("s_cselect_b32 s39, 41472, 36864", "s_mov_b32 s39, 36864\n    s_cselect_b32 s39, 41472, s39"))
    if 'L' not in exp: spin("L_ldc2", L_CSC, "ge_u32", 4, sreg="s44", vreg="v3", sleep=0)
    if W2 != W:
        a(f"s_addk_i32 s42, {W - W2}")
    quad("L_ld3", "v9", "s[12:13]", W2, rot=False)
    a(f"""
    s_cmp_lt_u32 s33, 16
    s_cbranch_scc1 L_lddr
    s_mov_b32 exec_hi, 0
    global_load_lds_dwordx4 v1, s[12:13]{nt}
    s_mov_b32 exec_hi, -1
    s_addk_i32 s42, 1
    L_lddr:
    """)
    stamp(4)
    rem = W2 - 1
    while rem > 0:
        step = min(3, rem)
        rem -= step
        a(f"s_waitcnt vmcnt({rem})")
        a(f"s_addk_i32 s42, {step}")
        prog()
    stamp(5)
    finish()

    a(f"""
    L_Q:
    s_mul_i32 s38, s36, 288
    v_lshrrev_b32 v3, 3, v0
    v_mul_u32_u24 v3, 36, v3
    v_add_u32 v3, s38, v3
    s_waitcnt lgkmcnt(0)
    global_load_dword v113, v2, s[30:31] sc1
    global_load_dwordx4 v[104:107], v3, s[4:5]
    global_load_dwordx4 v[108:111], v3, s[4:5] offset:16
    global_load_dword v112, v3, s[4:5] offset:32
    """)
    masks()
    a(f"""
    s_mov_b32 s42, 0x01000100
    s_mov_b32 s43, 0x03020302
    s_mov_b32 s46, 0xffffff00
    v_and_b32 v8, 7, v0
    v_lshlrev_b32 v8, 5, v8
    v_and_b32 v9, 16, v0
    v_add_u32 v8, v8, v9
    v_lshrrev_b32 v9, 5, v0
    v_lshl_add_u32 v8, v9, 3, v8
    s_lshl_b32 s44, s34, 12
    s_add_u32 s44, s44, {WS_QP}
    s_lshl_b32 s45, s36, 10
    s_lshl_b32 s47, s37, 8
    s_add_u32 s45, s45, s47
    s_lshl_b32 s47, s61, 12
    s_add_u32 s45, s45, s47
    s_add_u32 s45, s45, {WS_QP}
    v_add_u32 v8, s45, v8
    v_lshlrev_b32 v11, 4, v0
    v_add_u32 v9, s44, v11
    v_add_u32 v11, {L_V}, v11
    s_waitcnt vmcnt(3)
    v_add_u32 v113, 1, v113
    v_and_b32 v12, 0xff, v113
    v_or_b32 v10, 0x100, v12
    ds_write_b32 v2, v113 offset:{L_ENEW}
    ds_write_b32 v2, v10 offset:{L_TAU}
    """)
    spin("L_Qw", L_PROG, "ge_i32", 18, sleep=0)
    stamp(1)
    for t in range(12):
        a(f"ds_read_b128 v[{32+4*t}:{35+4*t}], v11 offset:{1024*t}")
    a("s_waitcnt vmcnt(0)")
    nread = 12
    for t in range(18):
        A0 = 20 + 4 * (t & 1)
        sel = "s42" if (t & 1) == 0 else "s43"
        x = 104 + (t >> 1)
        a(f"v_perm_b32 v10, v{x}, v{x}, {sel}")
        for d in range(4):
            a(f"v_and_b32 v{A0+d}, v10, v{4+d}")
        a(f"s_waitcnt lgkmcnt({nread-1-t})")
        src = "0" if t == 0 else "v[28:31]"
        a(f"v_mfma_f32_16x16x32_bf16 v[28:31], v[{A0}:{A0+3}], v[{32+4*t}:{35+4*t}], {src}")
        if nread < 18:
            a(f"ds_read_b128 v[{32+4*nread}:{35+4*nread}], v11 offset:{1024*nread}")
            nread += 1
    lds_inc(L_CS1)
    a(f"""
    v_permlane32_swap_b32 v28, v30
    v_permlane32_swap_b32 v29, v31
    v_add_f32_dpp v28, v30, v28 row_ror:8 {DPPF}
    v_add_f32_dpp v29, v31, v29 row_ror:8 {DPPF}
    v_and_or_b32 v28, v28, s46, v12
    v_and_or_b32 v29, v29, s46, v12
    s_mov_b32 exec_lo, 0x00ff00ff
    s_mov_b32 exec_hi, 0x00ff00ff
    global_store_dwordx2 v8, v[28:29], s[30:31] sc1
    s_mov_b64 exec, -1
    """)
    stamp(2)
    a("s_waitcnt vmcnt(0)")
    stamp(3)
    pollhead("L_Qpoll")
    for t in range(4):
        a(f"global_load_dwordx4 v[{32+4*t}:{35+4*t}], v9, s[30:31] offset:{1024*t} sc1")
    a("v_mov_b32 v10, 0")
    for t in range(4):
        a(f"s_waitcnt vmcnt({3-t})")
        for d in range(4):
            a(f"v_bitop3_b32 v10, v{32+4*t+d}, v10, v12 bitop3:0xde")
    a(f"""
    v_and_b32 v10, 0xff, v10
    v_cmp_ne_u32 vcc, 0, v10
    s_cbranch_vccnz L_Qpoll
    """)
    for d in range(4):
        a(f"v_add_f32 v{32+d}, v{32+d}, v{36+d}")
        a(f"v_add_f32 v{40+d}, v{40+d}, v{44+d}")
    for d in range(4):
        a(f"v_add_f32 v{32+d}, v{32+d}, v{40+d}")
    a(f"""
    v_cvt_pk_bf16_f32 v32, v32, v33
    v_cvt_pk_bf16_f32 v33, v34, v35
    v_lshlrev_b32 v8, 3, v0
    v_mov_b32 v10, 1
    ds_write_b64 v8, v[32:33] offset:{L_Q}
    ds_write_b32 v2, v10 offset:{L_FQ}
    """)
    stamp(4)
    GC1 = -2.0 * math.log2(math.e) * math.sqrt(2.0 / math.pi)
    GC3 = GC1 * 0.044715
    a(f"""
    s_cmp_lt_u32 s33, 16
    s_cbranch_scc1 L_O
    s_mul_i32 s38, s35, 36
    v_add_u32 v8, s38, v0
    s_mul_i32 s39, s51, 576
    v_add_u32 v9, s39, v8
    v_lshlrev_b32 v9, 1, v9
    s_mul_i32 s39, s51, {9*2304}
    s_add_u32 s39, s39, {WS_HP + 2304}
    v_and_b32 v13, 0x3c3, v8
    v_lshl_add_u32 v13, v13, 2, s39
    v_and_b32 v14, 4, v8
    v_lshl_add_u32 v13, v14, 5, v13
    v_and_b32 v14, 56, v8
    v_lshl_add_u32 v8, v14, 1, v13
    v_add_u32 v13, {3*2304}, v8
    v_add_u32 v14, {6*2304}, v8
    s_mov_b32 exec_hi, 15
    global_load_ushort v15, v9, s[18:19]
    s_mov_b32 s42, {f2u(GC3)}
    v_mov_b32 v11, {f2u(GC1)}
    """)
    pollhead("L_Hpoll")
    for t in range(9):
        base = ("v8", "v13", "v14")[t // 3]
        a(f"global_load_dword v{32+t}, {base}, s[30:31] offset:{2304*(t%3)-2304} sc1")
    a("v_mov_b32 v10, 0")
    a("s_waitcnt vmcnt(0)")
    for t in range(9):
        a(f"v_bitop3_b32 v10, v{32+t}, v10, v12 bitop3:0xde")
    a(f"""
    v_and_b32 v10, 0xff, v10
    v_cmp_ne_u32 vcc, 0, v10
    s_cbranch_vccnz L_Hpoll
    """)
    stamp(5)
    for t in range(1, 9):
        a(f"v_add_f32 v32, v32, v{32+t}")
    a(f"""
    v_lshlrev_b32 v15, 16, v15
    v_cvt_pk_bf16_f32 v8, v32, v32
    v_and_b32 v8, 0xffff0000, v8
    v_add_f32 v8, v8, v15
    v_cvt_pk_bf16_f32 v8, v8, v8
    v_and_b32 v8, 0xffff0000, v8
    v_mul_f32 v9, v8, v8
    v_fma_f32 v9, v9, s42, v11
    v_mul_f32 v9, v9, v8
    v_exp_f32 v9, v9
    v_add_f32 v9, 1.0, v9
    v_rcp_f32 v9, v9
    v_mul_f32 v32, v8, v9
    v_lshlrev_b32 v18, 2, v0
    s_branch L_vecout
    ; ---- o consumer ----
    L_O:
    s_lshl_b32 s38, s51, 4
    s_add_u32 s38, s38, s33
    s_lshl_b32 s39, s38, 11
    s_add_u32 s39, s39, {WS_OP}
    v_lshlrev_b32 v9, 4, v0
    v_add_u32 v9, s39, v9
    s_lshr_b32 s39, s38, 3
    s_lshl_b32 s39, s39, 11
    s_and_b32 s45, s38, 4
    s_lshl2_add_u32 s39, s45, s39
    s_add_u32 s39, s39, {WS_ST}
    v_and_b32 v8, 15, v0
    v_lshlrev_b32 v8, 7, v8
    v_add_u32 v8, s39, v8
    v_lshrrev_b32 v14, 3, v0
    v_lshlrev_b32 v14, 2, v14
    v_add_u32 v15, 32, v14
    v_and_b32 v18, 3, v0
    v_lshlrev_b32 v18, 5, v18
    v_and_b32 v19, 4, v0
    v_lshl_add_u32 v18, v19, 2, v18
    v_and_b32 v19, 16, v0
    v_lshrrev_b32 v19, 1, v19
    v_add_u32 v18, v18, v19
    v_lshrrev_b32 v19, 5, v0
    v_lshl_add_u32 v18, v19, 2, v18
    s_mov_b32 s41, {f2u(CSC)}
    s_mov_b32 s42, 0x07060501
    s_add_u32 s47, s48, 96
    """)
    spin("L_Og1", L_PROG, "ge_i32", "s47")
    pollhead("L_Spoll")
    a(f"""
    global_load_dwordx4 v[48:51], v8, s[30:31] sc1
    v_mov_b32 v10, 0
    s_waitcnt vmcnt(0)
    """)
    for d in range(4):
        a(f"v_bitop3_b32 v10, v{48+d}, v10, v12 bitop3:0xde")
    a(f"""
    v_and_b32 v10, 0xff, v10
    v_cmp_ne_u32 vcc, 0, v10
    s_cbranch_vccnz L_Spoll
    v_perm_b32 v48, v48, v49, s42
    v_max_f32_dpp v20, v48, v48 row_ror:1 {DPPF}
    v_max_f32_dpp v20, v20, v20 row_ror:2 {DPPF}
    v_max_f32_dpp v20, v20, v20 row_ror:4 {DPPF}
    v_max_f32_dpp v20, v20, v20 row_ror:8 {DPPF}
    v_sub_f32 v20, v48, v20
    v_mul_f32 v20, s41, v20
    v_exp_f32 v20, v20
    v_mul_f32 v21, v20, v50
    v_add_f32_dpp v21, v21, v21 row_ror:1 {DPPF}
    v_add_f32_dpp v21, v21, v21 row_ror:2 {DPPF}
    v_add_f32_dpp v21, v21, v21 row_ror:4 {DPPF}
    v_add_f32_dpp v21, v21, v21 row_ror:8 {DPPF}
    v_rcp_f32 v21, v21
    v_mul_f32 v20, v20, v21
    ds_bpermute_b32 v24, v14, v20
    ds_bpermute_b32 v25, v15, v20
    s_add_u32 s47, s48, 128
    """)
    spin("L_Og2", L_PROG, "ge_i32", "s47")
    pollhead("L_Opoll")
    for t in range(2):
        a(f"global_load_dwordx4 v[{32+4*t}:{35+4*t}], v9, s[30:31] offset:{1024*t} sc1")
    a("v_mov_b32 v10, 0")
    for t in range(2):
        a(f"s_waitcnt vmcnt({1-t})")
        for d in range(4):
            a(f"v_bitop3_b32 v10, v{32+4*t+d}, v10, v12 bitop3:0xde")
    a(f"""
    v_and_b32 v10, 0xff, v10
    v_cmp_ne_u32 vcc, 0, v10
    s_cbranch_vccnz L_Opoll
    """)
    stamp(5)
    for d in range(4):
        a(f"v_mul_f32 v{32+d}, v24, v{32+d}")
    for d in range(4):
        a(f"v_fmac_f32 v{32+d}, v25, v{36+d}")
    a(f"""
    v_permlane32_swap_b32 v32, v33
    v_permlane32_swap_b32 v34, v35
    v_add_f32 v32, v32, v33
    v_add_f32 v34, v34, v35
    v_permlane16_swap_b32 v32, v34
    v_add_f32 v32, v32, v34
    v_add_f32_dpp v32, v32, v32 row_ror:8 {DPPF}
    L_vecout:
    v_cvt_pk_bf16_f32 v32, v32, v32
    v_mov_b32 v10, 1
    ds_write_b32 v18, v32 offset:{L_VEC}
    ds_write_b32 v2, v10 offset:{L_FV}
    """)
    stamp(6)
    finish()

    a(f"""
    L_S:
    s_sub_u32 s44, s3, 3
    """)
    if 'T' in exp or 'U' in exp:
        fl = "sc1" if 'T' in exp else ""
        a(f"""
        s_cmp_lg_u32 s44, 3
        s_cbranch_scc1 L_notouch
        s_mul_i32 s45, s2, 4608
        v_lshlrev_b32 v3, 7, v0
        v_add_u32 v3, s45, v3
        s_mov_b32 exec_hi, 15
        s_waitcnt lgkmcnt(0)
        global_load_dword v118, v3, s[30:31] {fl}
        global_load_dword v117, v3, s[30:31] offset:64 {fl}
        s_mov_b32 exec_hi, -1
        L_notouch:
        """)
    a(f"""
    """)
    masks()
    a(f"""
    v_and_b32 v8, 4, v0
    v_lshlrev_b32 v8, 6, v8
    v_and_b32 v9, 48, v0
    v_lshl_add_u32 v8, v9, 2, v8
    v_and_b32 v9, 3, v0
    v_lshl_add_u32 v28, v9, 4, v8
    v_and_b32 v8, 12, v0
    v_lshlrev_b32 v8, 3, v8
    v_and_b32 v9, 16, v0
    v_add_u32 v8, v8, v9
    v_lshrrev_b32 v9, 5, v0
    v_lshl_add_u32 v29, v9, 2, v8
    s_lshl_b32 s45, s44, 7
    s_add_u32 s45, s45, {L_S}
    v_add_u32 v27, s45, v29
    s_lshl_b32 s45, s44, 12
    s_add_u32 s45, s45, {L_K}
    v_lshlrev_b32 v31, 4, v0
    v_add_u32 v30, s45, v31
    v_and_b32 v9, 8, v0
    v_cmp_eq_u32 vcc, 0, v9
    s_lshl2_add_u32 s47, s44, s48
    s_add_u32 s47, s47, 4
    s_movk_i32 s49, 3
    """)
    spin("L_Sq", L_FQ, "lg_u32", 0)
    stamp(1)
    a(f"""
    ds_read_b128 v[12:15], v28 offset:{L_Q}
    s_waitcnt lgkmcnt(0)
    """)
    for d in range(4):
        a(f"v_cndmask_b32 v{8+d}, 0, v{12+d}, vcc")
    for d in range(4):
        a(f"v_cndmask_b32_e64 v{12+d}, v{12+d}, 0, vcc")
    a("L_Sloop:")
    spin("L_Sk", L_PROG, "ge_i32", "s47")
    for c in range(4):
        a(f"ds_read_b128 v[{32+4*c}:{35+4*c}], v30 offset:{1024*c}")
    a(f"""
    v_add_u32 v30, 0x4000, v30
    s_add_u32 s47, s47, 16
    s_waitcnt lgkmcnt(3)
    v_mfma_f32_16x16x32_bf16 v[16:19], v[8:11], v[32:35], 0
    s_waitcnt lgkmcnt(2)
    v_mfma_f32_16x16x32_bf16 v[16:19], v[12:15], v[36:39], v[16:19]
    s_waitcnt lgkmcnt(1)
    v_mfma_f32_16x16x32_bf16 v[20:23], v[8:11], v[40:43], 0
    s_waitcnt lgkmcnt(0)
    v_mfma_f32_16x16x32_bf16 v[20:23], v[12:15], v[44:47], v[20:23]
    """)
    for m in range(2):
        a(f"v_mov_b32_dpp v{24+m}, v{16+4*m} quad_perm:[0,0,0,0] {DPPF}")
    for r in range(1, 4):
        for m in range(2):
            a(f"v_add_f32_dpp v{24+m}, v{16+4*m+r}, v{24+m} quad_perm:[{r},{r},{r},{r}] {DPPF}")
    a(f"""
    ds_write2_b32 v27, v24, v25 offset0:0 offset1:2
    """)
    a(f"""
    v_add_u32 v27, 512, v27
    s_sub_u32 s49, s49, 1
    s_cbranch_scc0 L_Sloop
    """)
    lds_inc(L_CSC)
    stamp(2)
    a(f"""
    ds_read_b32 v12, v2 offset:{L_TAU}
    s_mov_b32 s46, 0xffffff00
    s_add_u32 s45, s44, 3
    s_and_b32 s45, s45, 3
    v_lshrrev_b32 v29, 3, v0
    v_lshlrev_b32 v29, 4, v29
    s_lshl_b32 s47, s45, 7
    v_add_u32 v29, s47, v29
    s_lshl_b32 s47, s45, 12
    s_add_u32 s47, s47, {L_V}
    v_add_u32 v30, s47, v31
    s_lshl2_add_u32 s62, s45, s48
    s_add_u32 s62, s62, 68
    v_mov_b32 v16, 0
    v_mov_b32 v17, 0
    v_mov_b32 v18, 0
    v_mov_b32 v19, 0
    s_movk_i32 s49, 3
    s_cmp_eq_u32 s44, 0
    s_cbranch_scc1 L_SM
    """)
    spin("L_Pp", L_FP, "lg_u32", 0)
    a(f"""
    s_branch L_Ploop0
    L_SM:
    s_setprio 2
    s_mov_b32 s41, {f2u(CSC)}
    s_lshl_b32 s45, s34, 11
    s_lshl_b32 s47, s35, 7
    s_add_u32 s45, s45, s47
    s_add_u32 s45, s45, {WS_ST}
    v_lshlrev_b32 v11, 4, v0
    v_add_u32 v11, s45, v11
    v_and_b32 v8, 32, v0
    v_lshlrev_b32 v10, 8, v8
    v_and_b32 v8, 12, v0
    v_lshl_add_u32 v10, v8, 9, v10
    v_and_b32 v8, 16, v0
    v_lshl_add_u32 v10, v8, 2, v10
    v_and_b32 v8, 3, v0
    v_lshl_add_u32 v10, v8, 4, v10
    s_lshl_b32 s45, s34, 14
    s_lshl_b32 s47, s35, 7
    s_add_u32 s45, s45, s47
    s_add_u32 s45, s45, {WS_OP}
    v_add_u32 v10, s45, v10
    """)
    spin("L_Pw", L_CSC, "ge_u32", 4, sleep=0)
    a(f"""
    ds_read_b128 v[32:35], v31 offset:{L_S}
    ds_read_b128 v[36:39], v31 offset:{L_S+1024}
    v_and_b32 v12, 0xff, v12
    s_waitcnt lgkmcnt(0)
    v_max3_f32 v13, v32, v33, v34
    v_max3_f32 v14, v35, v36, v37
    v_max3_f32 v13, v13, v38, v39
    v_max_f32 v13, v13, v14
    v_max_f32_dpp v13, v13, v13 quad_perm:[2,3,0,1] {DPPF}
    v_max_f32_dpp v13, v13, v13 row_ror:4 {DPPF}
    v_max_f32_dpp v13, v13, v13 row_ror:8 {DPPF}
    v_mov_b32 v14, v13
    v_permlane16_swap_b32 v14, v13
    v_max_f32 v13, v13, v14
    v_mov_b32 v14, v13
    v_permlane32_swap_b32 v14, v13
    v_max_f32 v13, v13, v14
    v_mul_f32 v14, s41, v13
    """)
    for i in range(8):
        a(f"v_fma_f32 v{32+i}, v{32+i}, s41, -v14")
    for i in range(8):
        a(f"v_exp_f32 v{32+i}, v{32+i}")
    for i in range(8):
        a(f"v_cvt_pk_bf16_f32 v{40+i}, v{32+i}, v{32+i}")
    a(f"""
    ds_write_b128 v31, v[40:43] offset:{L_S}
    ds_write_b128 v31, v[44:47] offset:{L_S+1024}
    v_mov_b32 v15, 1
    ds_write_b32 v2, v15 offset:{L_FP}
    v_add_f32 v32, v32, v33
    v_add_f32 v34, v34, v35
    v_add_f32 v36, v36, v37
    v_add_f32 v38, v38, v39
    v_add_f32 v32, v32, v34
    v_add_f32 v36, v36, v38
    v_add_f32 v14, v32, v36
    v_add_f32_dpp v14, v14, v14 quad_perm:[2,3,0,1] {DPPF}
    v_add_f32_dpp v14, v14, v14 row_ror:4 {DPPF}
    v_add_f32_dpp v14, v14, v14 row_ror:8 {DPPF}
    v_mov_b32 v15, v14
    v_permlane16_swap_b32 v15, v14
    v_add_f32 v14, v14, v15
    v_mov_b32 v15, v14
    v_permlane32_swap_b32 v15, v14
    v_add_f32 v14, v14, v15
    v_and_or_b32 v20, v13, s46, v12
    v_lshl_or_b32 v21, v13, 8, v12
    v_and_or_b32 v22, v14, s46, v12
    v_mov_b32 v23, v12
    s_mov_b64 exec, 3
    global_store_dwordx4 v11, v[20:23], s[30:31] sc1
    s_mov_b64 exec, -1
    """)
    stamp(3)
    a(f"""
    L_Ploop0:
    L_Ploop:
    ds_read_b128 v[24:27], v29 offset:{L_S}
    v_add_u32 v29, 512, v29
    s_waitcnt lgkmcnt(0)
    """)
    for c in range(4):
        for d in range(4):
            a(f"v_and_b32 v{48+4*c+d}, v{24+c}, v{4+d}")
    spin("L_Pv", L_PROG, "ge_i32", "s62", sleep=0)
    for c in range(4):
        a(f"ds_read_b128 v[{32+4*c}:{35+4*c}], v30 offset:{1024*c}")
    a(f"""
    v_add_u32 v30, 0x4000, v30
    s_add_u32 s62, s62, 16
    """)
    for c in range(4):
        a(f"s_waitcnt lgkmcnt({3-c})")
        a(f"v_mfma_f32_16x16x32_bf16 v[16:19], v[{48+4*c}:{51+4*c}], v[{32+4*c}:{35+4*c}], v[16:19]")
    a(f"""
    s_sub_u32 s49, s49, 1
    s_cbranch_scc0 L_Ploop
    s_cmp_eq_u32 s44, 0
    s_cbranch_scc1 L_Pfin
    s_lshl_b32 s45, s44, 10
    v_add_u32 v8, s45, v31
    s_nop 3
    ds_write_b128 v8, v[16:19] offset:{L_OW-1024}
    """)
    lds_inc(L_CPV)
    a("s_branch L_L2")
    a("L_Pfin:")
    stamp(4)
    spin("L_Pc", L_CPV, "ge_u32", 3, sleep=0)
    for w in range(3):
        a(f"ds_read_b128 v[{32+4*w}:{35+4*w}], v31 offset:{L_OW+1024*w}")
    for w in range(3):
        a(f"s_waitcnt lgkmcnt({2-w})")
        for d in range(0, 4, 2):
            a(f"v_pk_add_f32 v[{16+d}:{17+d}], v[{16+d}:{17+d}], v[{32+4*w+d}:{33+4*w+d}]")
    for r in range(4):
        a(f"v_and_or_b32 v{16+r}, v{16+r}, s46, v12")
    a("global_store_dwordx4 v10, v[16:19], s[30:31] sc1")
    stamp(5)
    finish()

    a(f"""
    L_L2:
    s_sub_u32 s44, s44, 1
    v_lshrrev_b32 v8, 3, v0
    v_mul_u32_u24 v1, 1152, v8
    v_and_b32 v9, 7, v0
    v_lshl_add_u32 v1, v9, 4, v1
    s_mul_i32 s45, s44, 384
    s_add_u32 s45, s45, {L_K}
    v_add_u32 v1, s45, v1
    v_and_b32 v9, 3, v0
    v_lshl_add_u32 v30, v9, 3, v8
    v_lshlrev_b32 v30, 2, v30
    v_lshlrev_b32 v31, 2, v8
    v_bfe_u32 v8, v0, 4, 2
    v_and_b32 v10, 8, v0
    v_lshrrev_b32 v10, 1, v10
    v_add_u32 v8, v8, v10
    v_lshlrev_b32 v8, 15, v8
    v_and_b32 v9, 7, v0
    v_lshl_add_u32 v8, v9, 4, v8
    s_lshl_b32 s38, s32, 4
    s_add_u32 s38, s38, s35
    s_and_b32 s39, s33, 16
    s_lshl3_add_u32 s38, s39, s38
    s_lshl_b32 s38, s38, 7
    s_mul_i32 s47, s44, {6*32768}
    s_add_u32 s47, s47, s38
    s_add_u32 s47, s47, {WS_FP}
    v_add_u32 v13, s47, v8
    """)
    for i in range(12):
        a(f"v_mov_b32 v{16+i}, 0")
    a(f"s_add_u32 s47, s48, {128+27}")
    spin("L_2a", L_PROG, "ge_i32", "s47")
    stamp(3)
    for rg in range(3):
        for k in range(3):
            a(f"ds_read_b128 v[{32+12*rg+4*k}:{35+12*rg+4*k}], v1 offset:{9216*rg+128*k}")
    a(f"""
    v_and_b32 v12, 0xff, v12
    s_cmp_ge_u32 s33, 16
    s_cselect_b32 s47, {128+41}, s47
    s_cselect_b32 s45, s48, 9
    s_add_u32 s47, s47, s45
    """)
    spin("L_2b", L_PROG, "ge_i32", "s47", sleep=0)
    stamp(4)
    for rg in range(3, 5):
        for k in range(3):
            a(f"ds_read_b128 v[{32+12*rg+4*k}:{35+12*rg+4*k}], v1 offset:{9216*rg+128*k}")
    spin("L_2c", L_FV, "lg_u32", 0, sleep=0)
    a(f"""
    ds_read_b32 v28, v30 offset:{L_VEC}
    ds_read_b32 v29, v31 offset:{L_VEC+128}
    s_waitcnt lgkmcnt(0)
    """)
    stamp(5)
    for rg in range(4):
        A0 = 8 if rg & 1 else 92
        for d in range(4):
            a(f"v_and_b32_dpp v{A0+d}, v28, v{4+d} quad_perm:[{rg},{rg},{rg},{rg}] {DPPF}")
        for k in range(3):
            a(f"v_mfma_f32_16x16x32_bf16 v[{16+4*k}:{19+4*k}], v[{A0}:{A0+3}], v[{32+12*rg+4*k}:{35+12*rg+4*k}], v[{16+4*k}:{19+4*k}]")
    a("""
    s_cmp_lt_u32 s33, 16
    s_cbranch_scc1 L_pub
    """)
    for d in range(4):
        a(f"v_and_b32 v{92+d}, v29, v{4+d}")
    for k in range(3):
        a(f"v_mfma_f32_16x16x32_bf16 v[{16+4*k}:{19+4*k}], v[92:95], v[{80+4*k}:{83+4*k}], v[{16+4*k}:{19+4*k}]")
    a("L_pub:")
    a("s_nop 5")
    for r in range(4):
        a(f"v_permlane32_swap_b32 v{16+r}, v{20+r}")
    for r in range(4):
        a(f"v_mov_b32 v{8+r}, v{24+r}")
    for r in range(4):
        a(f"v_add_f32_dpp v{16+r}, v{20+r}, v{16+r} row_ror:8 {DPPF}")
    for r in range(4):
        a(f"v_permlane32_swap_b32 v{8+r}, v{24+r}")
    for r in range(4):
        a(f"v_add_f32_dpp v{16+r}, v{8+r}, v{24+r} row_ror:8 row_mask:0xf bank_mask:0xc")
    for r in range(4):
        a(f"v_and_or_b32 v{16+r}, v{16+r}, s46, v12")
    a(f"""
    s_mov_b32 exec_hi, 0x00ff00ff
    global_store_dwordx4 v13, v[16:19], s[30:31] sc1
    """)
    stamp(6)
    a("L_fin:")
    finish()

    a(f"""
    L_L1:
    s_cmp_ge_u32 s33, 27
    s_cbranch_scc1 L_R
    s_mul_i32 s38, s33, 57
    s_lshr_b32 s38, s38, 9
    s_mul_i32 s39, s38, 9
    s_sub_u32 s39, s33, s39
    v_lshrrev_b32 v8, 3, v0
    v_and_b32 v9, 3, v0
    v_lshl_add_u32 v8, v9, 3, v8
    v_lshlrev_b32 v8, 1, v8
    s_lshl_b32 s45, s39, 7
    v_add_u32 v8, s45, v8
    s_waitcnt lgkmcnt(0)
    global_load_ushort v28, v8, s[4:5]
    global_load_ushort v29, v8, s[4:5] offset:64
    """)
    masks()
    a(f"""
    s_mul_i32 s45, s32, 20736
    s_mul_i32 s47, s39, 2304
    s_add_u32 s45, s45, s47
    s_mul_i32 s47, s38, 768
    s_add_u32 s45, s45, s47
    s_add_u32 s45, s45, {WS_HP}
    v_bfe_u32 v8, v0, 4, 2
    v_and_b32 v10, 8, v0
    v_lshrrev_b32 v10, 1, v10
    v_add_u32 v8, v8, v10
    v_lshlrev_b32 v8, 7, v8
    v_and_b32 v9, 7, v0
    v_lshl_add_u32 v8, v9, 4, v8
    v_add_u32 v13, s45, v8
    v_lshlrev_b32 v1, 4, v0
    v_add_u32 v1, {L_V + 18*1024}, v1
    s_mov_b32 s46, 0xffffff00
    """)
    for i in range(12):
        a(f"v_mov_b32 v{16+i}, 0")
    a("""
    s_waitcnt vmcnt(0)
    v_lshl_or_b32 v28, v28, 16, v28
    v_lshl_or_b32 v29, v29, 16, v29
    """)
    spin("L_1t", L_TAU, "lg_u32", 0, vreg="v12")
    a("v_and_b32 v12, 0xff, v12")
    a("s_movk_i32 s49, 1")
    spin("L_1w", L_PROG, "ge_i32", 42)
    stamp(1)
    a("L_1loop:")
    for n in range(12):
        a(f"ds_read_b128 v[{32+4*n}:{35+4*n}], v1 offset:{1024*n}")
    for rg in range(4):
        A0 = 8 if rg & 1 else 92
        for d in range(4):
            a(f"v_and_b32_dpp v{A0+d}, v28, v{4+d} quad_perm:[{rg},{rg},{rg},{rg}] {DPPF}")
        a(f"s_waitcnt lgkmcnt({9-3*rg})")
        for k in range(3):
            a(f"v_mfma_f32_16x16x32_bf16 v[{16+4*k}:{19+4*k}], v[{A0}:{A0+3}], v[{32+12*rg+4*k}:{35+12*rg+4*k}], v[{16+4*k}:{19+4*k}]")
    a(f"""
    v_mov_b32 v28, v29
    v_add_u32 v1, {12*1024}, v1
    s_sub_u32 s49, s49, 1
    s_cbranch_scc0 L_1loop
    """)
    lds_inc(L_CS1)
    stamp(2)
    a("s_branch L_pub")

    a(f"""
    L_R:
    """)
    lds_inc(L_CS1)
    a(f"""
    s_sub_u32 s36, s33, 27
    s_lshl3_add_u32 s36, s36, s32
    s_cmp_ge_u32 s36, 36
    s_cbranch_scc1 L_fin
    s_lshr_b32 s37, s36, 2
    s_lshl_b32 s37, s37, 6
    s_and_b32 s38, s36, 1
    s_lshl_b32 s38, s38, 5
    s_add_u32 s37, s37, s38
    s_and_b32 s38, s36, 2
    s_lshl_b32 s38, s38, 1
    s_add_u32 s37, s37, s38
    v_and_b32 v8, 3, v0
    v_lshlrev_b32 v8, 3, v8
    v_lshrrev_b32 v9, 4, v0
    v_add3_u32 v8, v8, v9, s37
    v_lshlrev_b32 v8, 1, v8
    v_lshlrev_b32 v3, 2, v0
    v_mov_b32 v20, 0
    v_mov_b32 v25, 0
    s_waitcnt lgkmcnt(0)
    global_load_ushort v9, v8, s[22:23]
    """)
    for i in range(4):
        a(f"global_load_dword v{16+i}, v3, s[4:5] offset:{256*i}")
        a(f"global_load_dword v{21+i}, v3, s[24:25] offset:{256*i}")
    a(f"""
    s_mov_b32 exec_hi, 0
    global_load_dword v20, v3, s[4:5] offset:1024
    global_load_dword v25, v3, s[24:25] offset:1024
    s_mov_b32 exec_hi, -1
    s_lshr_b32 s38, s36, 1
    s_lshl_b32 s38, s38, 15
    s_and_b32 s39, s36, 1
    s_lshl_b32 s39, s39, 6
    s_add_u32 s38, s38, s39
    s_add_u32 s38, s38, {WS_FP + 4096}
    v_lshrrev_b32 v1, 2, v0
    v_lshlrev_b32 v1, 7, v1
    v_and_b32 v4, 3, v0
    v_lshl_add_u32 v1, v4, 4, v1
    v_add_u32 v26, s38, v1
    v_add_u32 v27, 0x2000, v26
    v_add_u32 v28, 0x4000, v26
    v_add_u32 v29, 0x6000, v26
    v_mov_b32 v10, 0
    v_mov_b32 v11, 0x3f803f80
    s_waitcnt vmcnt(0)
    """)
    for i in range(5):
        a(f"""
        v_lshlrev_b32 v12, 16, v{16+i}
        v_and_b32 v13, 0xffff0000, v{16+i}
        v_lshlrev_b32 v14, 16, v{21+i}
        v_and_b32 v15, 0xffff0000, v{21+i}
        v_mul_f32 v12, v12, v14
        v_mul_f32 v13, v13, v15
        v_cvt_pk_bf16_f32 v12, v12, v13
        v_dot2c_f32_bf16 v10, v12, v11
        """)
    a(f"""
    v_add_f32_dpp v10, v10, v10 row_ror:1 {DPPF}
    v_add_f32_dpp v10, v10, v10 row_ror:2 {DPPF}
    v_add_f32_dpp v10, v10, v10 row_ror:4 {DPPF}
    v_add_f32_dpp v10, v10, v10 row_ror:8 {DPPF}
    v_mov_b32 v11, v10
    v_permlane16_swap_b32 v11, v10
    v_add_f32 v10, v10, v11
    v_mov_b32 v11, v10
    v_permlane32_swap_b32 v11, v10
    v_add_f32 v10, v10, v11
    v_cvt_pk_bf16_f32 v10, v10, v10
    v_and_b32 v10, 0xffff0000, v10
    v_mul_f32 v10, {f2u(-math.log2(math.e))}, v10
    v_exp_f32 v10, v10
    v_add_f32 v10, 1.0, v10
    v_rcp_f32 v10, v10
    v_cvt_pk_bf16_f32 v10, v10, v10
    v_and_b32 v5, 0xffff0000, v10
    v_sub_f32 v6, 1.0, v5
    v_cvt_pk_bf16_f32 v6, v6, v6
    v_and_b32 v6, 0xffff0000, v6
    v_lshlrev_b32 v7, 16, v9
    """)
    spin("L_Rt", L_TAU, "lg_u32", 0, vreg="v12")
    a(f"""
    ds_read_b32 v13, v2 offset:{L_ENEW}
    v_and_b32 v12, 0xff, v12
    s_add_u32 s47, s48, {128+41}
    """)
    stamp(1)
    spin("L_Rg", L_PROG, "ge_i32", "s47")
    stamp(2)
    pollhead("L_Rpoll")
    for t in range(16):
        base, off = f"v{26 + t // 4}", 2048 * (t % 4) - 4096
        a(f"global_load_dwordx4 v[{32+4*t}:{35+4*t}], {base}, s[30:31] offset:{off} sc1")
    a("v_mov_b32 v10, 0")
    for t in range(16):
        a(f"s_waitcnt vmcnt({15-t})")
        for d in range(4):
            a(f"v_bitop3_b32 v10, v{32+4*t+d}, v10, v12 bitop3:0xde")
        if t not in (0, 8):
            acc = 32 if t < 8 else 64
            for d in range(0, 4, 2):
                a(f"v_pk_add_f32 v[{acc+d}:{acc+d+1}], v[{acc+d}:{acc+d+1}], v[{32+4*t+d}:{33+4*t+d}]")
    a(f"""
    v_and_b32 v10, 0xff, v10
    v_cmp_ne_u32 vcc, 0, v10
    s_cbranch_vccnz L_Rpoll
    """)
    stamp(3)
    for e in range(4):
        a(f"v_permlane32_swap_b32 v{32+e}, v{64+e}")
    for e in range(4):
        a(f"v_add_f32 v{32+e}, v{32+e}, v{64+e}")
    a(f"""
    v_permlane16_swap_b32 v32, v33
    v_permlane16_swap_b32 v34, v35
    v_add_f32 v32, v32, v33
    v_add_f32 v34, v34, v35
    v_add_f32_dpp v32, v32, v32 row_ror:4 {DPPF}
    v_add_f32_dpp v34, v34, v34 row_ror:4 {DPPF}
    v_add_f32_dpp v32, v32, v32 row_ror:8 {DPPF}
    v_add_f32_dpp v34, v34, v34 row_ror:8 {DPPF}
    v_permlane32_swap_b32 v32, v34
    v_cvt_pk_bf16_f32 v32, v32, v34
    v_and_b32 v34, 0xffff0000, v32
    v_lshlrev_b32 v32, 16, v32
    v_add_f32 v34, v34, v7
    v_cvt_pk_bf16_f32 v34, v34, v34
    v_and_b32 v34, 0xffff0000, v34
    v_mul_f32 v32, v32, v5
    v_mul_f32 v34, v34, v6
    v_cvt_pk_bf16_f32 v32, v32, v34
    v_and_b32 v34, 0xffff0000, v32
    v_lshlrev_b32 v32, 16, v32
    v_add_f32 v32, v32, v34
    v_cvt_pk_bf16_f32 v32, v32, v32
    s_mov_b32 exec_lo, 0x000f000f
    s_mov_b32 exec_hi, 0x000f000f
    global_store_short v8, v32, s[26:27]
    s_cmp_lg_u32 s36, 0
    s_cbranch_scc1 L_fin
    s_mov_b64 exec, 1
    global_store_dword v2, v13, s[30:31] sc1
    """)
    finish()
    if stamps:
        a(f"""
        L_stamp_out:
        s_memrealtime s[78:79]
        s_mov_b64 exec, 1
        s_waitcnt lgkmcnt(0)
        s_lshl_b32 s60, s2, 4
        s_add_u32 s60, s60, s3
        s_lshl_b32 s60, s60, 5
        s_add_u32 s60, s60, {WS_DBG}
        v_mov_b32 v1, s60
        """)
        for i in range(8):
            a(f"v_mov_b32 v{120+i}, s{64+2*i}")
        a("""
        global_store_dwordx4 v1, v[120:123], s[30:31]
        global_store_dwordx4 v1, v[124:127], s[30:31] offset:16
        """)
    a("L_exit:")
    a("s_endpgm")
    a.raw("L_codeend:")
    a.raw(f".fill ({CODE_PF} - (L_codeend - {KNAME})) / 4, 4, 0xbf800000")
    a.raw('.section .rodata,"a"')
    a.raw(".p2align 6")
    a.raw(f".amdhsa_kernel {KNAME}")
    a.raw("  .amdhsa_next_free_vgpr 128")
    a.raw("  .amdhsa_next_free_sgpr 96")
    a.raw("  .amdhsa_accum_offset 128")
    a.raw("  .amdhsa_group_segment_fixed_size 0")
    a.raw("  .amdhsa_kernarg_size 112")
    a.raw("  .amdhsa_user_sgpr_count 2")
    a.raw("  .amdhsa_user_sgpr_kernarg_segment_ptr 1")
    a.raw("  .amdhsa_system_sgpr_workgroup_id_x 1")
    a.raw(".end_amdhsa_kernel")
    t = a.text()
    if 'P' in exp:
        import re
        t = re.sub(r"    s_cbranch_vccnz L_.poll\n", "", t)
    if 'N' in exp:
        import re
        t = re.sub(r"    global_load_dword(x4)? v\[?(3[2-9]|[4-9][0-9])[^\n]* sc1\n", "", t)
    if 'S' in exp:
        import re
        t = re.sub(r"    global_store_dword(x2|x4)? [^\n]* sc1\n", "", t)
    import re
    def cut(label, endlabel_pat, t, pat):
        i0 = t.index(label + ":")
        i1 = t.index(endlabel_pat, i0)
        return t[:i0] + re.sub(pat, "", t[i0:i1]) + t[i1:]
    LD = r"    global_load_dword(x4)? [^\n]* sc1\n"
    if 'R' in exp: t = cut("L_Rpoll", "v_cmp_ne_u32", t, LD)
    if 'O' in exp:
        t = cut("L_Opoll", "v_cmp_ne_u32", t, LD); t = cut("L_Spoll", "v_cmp_ne_u32", t, LD)
    if 'Q' in exp:
        t = cut("L_Qpoll", "v_cmp_ne_u32", t, LD); t = cut("L_Hpoll", "v_cmp_ne_u32", t, LD)
    def rm(pat, t):
        assert t.count(pat) == 1, pat
        return t.replace(pat, "")
    if '1' in exp: t = rm("    global_store_dwordx2 v8, v[28:29], s[30:31] sc1\n", t)
    if '2' in exp: t = rm("    global_store_dwordx4 v11, v[20:23], s[30:31] sc1\n", t)
    if '3' in exp: t = rm("    global_store_dwordx4 v10, v[16:19], s[30:31] sc1\n", t)
    if '4' in exp: t = rm("    global_store_dwordx4 v13, v[16:19], s[30:31] sc1\n", t)
    if '6' in exp: t = t.replace("    s_branch L_pub\n", "    s_branch L_fin\n")
    if 'e' in exp: t = re.sub(r"(global_store[^\n]*) sc1\n", r"\1\n", t)
    if 'f' in exp: t = re.sub(r"(global_store[^\n]*) sc1\n", r"\1 sc0\n", t)
    if 'a' in exp: t = re.sub(r"(global_load[^\n]*) sc1\n", r"\1 sc0 sc1\n", t)
    if 'b' in exp: t = re.sub(r"(global_store[^\n]*) sc1\n", r"\1 sc0 sc1\n", t)
    if 'c' in exp: t = re.sub(r"(global_load[^\n]*) sc1\n", r"\1 sc1 nt\n", t)
    if 'd' in exp: t = re.sub(r"(global_store[^\n]*) sc1\n", r"\1 sc1 nt\n", t)
    return t

if __name__ == "__main__":
    open('k4.s', 'w').write(gen())
    open('k4_st.s', 'w').write(gen(stamps=True))
    open('k4_s0_st.s', 'w').write(gen(stamps=True, shift=0))
    open('k4_s4_st.s', 'w').write(gen(stamps=True, shift=4))
    for m in ('i1', 'i4'):
        for W in (20, 24, 32):
            open(f'k4_{m}_{W}_st.s', 'w').write(gen(stamps=True, kv=m, W=W))
    open(f'k4_20_20_st.s', 'w').write(gen(stamps=True, W=20))
    open(f'k4_r1_st.s', 'w').write(gen(stamps=True, rotm=1))
    for e in ('P', 'PN', 'PNS', 'PNe', 'PNb', 'PN124', 'PN1236', 'PN4', 'PN3', 'PN6'):
        open(f'k4_i4_20x{e}_st.s', 'w').write(gen(stamps=True, exp=e, kv='i4', W=20))
    for e in ('P', 'PN', 'PNS'):
        open(f'k4x{e}_st.s', 'w').write(gen(stamps=True, exp=e))
    for W, W2 in ((24, 32), (28, 28), (32, 32)):
        open(f'k4_{W}_{W2}_st.s', 'w').write(gen(stamps=True, W=W, W2=W2))
```

```python
import sys, math, struct, re
from asmlib import Asm
KNAME = "gated_mix__sliding_block_cached__dense_activation_gelu__decode_kernel"

WS_QP = 0x1000
WS_ST = 0x18000
WS_OP = 0x20000
WS_HP = 0x60000
WS_FP = 0x90000
WS_DBG = 0x200000
L_TAU, L_FQ, L_CSC, L_CS1, L_FV, L_ENEW, L_FP, L_CPV, L_LOC, L_PUB = 0, 4, 8, 12, 16, 20, 24, 28, 32, 40
L_PROG = 256
L_Q = 512
L_S = 1024
L_OW = 3072
L_VEC = 6144
L_K = 7168
L_V = L_K + 65536
L_W = L_V + 65536
LDS_BYTES = L_W + 24576
NWAVES = 7
def f2u(f): return struct.unpack('<I', struct.pack('<f', f))[0]
CSC = (128 ** -0.5) * math.log2(math.e)
DPPF = "row_mask:0xf bank_mask:0xf"
CODE_PF = 12672
MFMA = "v_mfma_f32_16x16x32_bf16"

def gen(stamps=False, W=22, jrot=15, G=4, ogate=10, sgate=32, qgate=60, hgate=0, rgate=27, sent=2, forcelocal=None, mkn=2, rdepth=1, rstag=7, npre=None, W2=None, early=False, trk=None, trv=None, pf='', pol=None, nop='', finlocal=True, W1=None, swz=True, light=True, npo=15, Wo=None):
    W2 = W2 or W
    nt = " nt"
    a = Asm()
    hdr = open('gated_mix__sliding_block_cached__dense_activation_gelu__decode.s.ref').read().split('\n')
    for l in hdr:
        if l.startswith('; @launch'): break
        a.raw(l)
    a.raw(f"; @launch grid=(256,1,1) block=({NWAVES*64},1,1) lds={LDS_BYTES}")
    a.raw('.amdgcn_target "amdgcn-amd-amdhsa--gfx950"')
    a.raw(".text")
    a.raw(f".globl {KNAME}")
    a.raw(".p2align 8")
    a.raw(f".type {KNAME},@function")
    a.raw(f"{KNAME}:")
    def stamp(i):
        if stamps:
            a(f"s_memrealtime s[{64+2*i}:{65+2*i}]")
    def zstamps():
        if stamps:
            for i in range(1, 8):
                a(f"s_mov_b64 s[{64+2*i}:{65+2*i}], 0")
    def finish():
        a("s_branch L_stamp_out" if stamps else "s_endpgm")
    def spin(name, off, cmpop, val, sreg="s40", vreg="v3", sleep=1, extra=""):
        a(f"""
        s_mov_b32 s50, 0x400000
        {name}:
        ds_read_b32 {vreg}, v2 offset:{off}
        {extra}
        s_waitcnt lgkmcnt(0)
        v_readfirstlane_b32 {sreg}, {vreg}
        s_cmp_{cmpop} {sreg}, {val}
        s_cbranch_scc1 {name}_done
        {f"s_sleep {sleep}" if sleep else ""}
        s_sub_u32 s50, s50, 1
        s_cbranch_scc0 {name}
        s_endpgm
        {name}_done:
        """)
    def masks():
        a("""
        v_and_b32 v8, 1, v0
        v_lshlrev_b32 v8, 4, v8
        v_mov_b32 v9, 0xffff
        v_lshlrev_b32 v8, v8, v9
        v_bfe_u32 v9, v0, 1, 2
        v_cmp_eq_u32 vcc, 0, v9
        v_cmp_eq_u32 s[52:53], 1, v9
        v_cmp_eq_u32 s[54:55], 2, v9
        v_cmp_eq_u32 s[56:57], 3, v9
        v_cndmask_b32 v4, 0, v8, vcc
        v_cndmask_b32 v5, 0, v8, s[52:53]
        v_cndmask_b32 v6, 0, v8, s[54:55]
        v_cndmask_b32 v7, 0, v8, s[56:57]
        """)
    def lds_inc(off, vone="v3"):
        a(f"""
        v_mov_b32 {vone}, 1
        s_mov_b64 exec, 1
        ds_add_u32 v2, {vone} offset:{off}
        s_mov_b64 exec, -1
        """)
    def pollhead(name):
        a(f"""
        s_mov_b32 s50, 0x40000
        {name}:
        s_sub_u32 s50, s50, 1
        s_cbranch_scc1 L_exit
        """)
    def chk(regs, acc="v10", first=True):
        for i in range(0, len(regs), 2):
            a(f"v_xor_b32 v{regs[i]}, v{regs[i]}, v12")
            a(f"v_xor_b32 v{regs[i+1]}, v{regs[i+1]}, v12")
            if first: a(f"v_or_b32 {acc}, v{regs[i]}, v{regs[i+1]}"); first = False
            else: a(f"v_or3_b32 {acc}, {acc}, v{regs[i]}, v{regs[i+1]}")
    def chkend(label, acc="v10"):
        a(f"""
        v_and_b32 {acc}, 0xff, {acc}
        v_cmp_ne_u32 vcc, 0, {acc}
        s_cbranch_vccnz {label}
        """)
    uid = [0]
    def store2(ins):
        uid[0] += 1
        u = uid[0]
        a(f"""
        s_cmp_lg_u32 s82, 0
        s_cbranch_scc1 L_t{u}a
        {ins} sc1
        s_branch L_t{u}b
        L_t{u}a:
        {ins}
        L_t{u}b:
        """)
    def tau_from(sreg):
        a(f"""
        s_bfe_u32 s82, {sreg}, 0x10009
        s_and_b32 s45, {sreg}, 0xff
        v_mov_b32 v12, s45
        s_mov_b32 s46, 0xffffff00
        """)
    def l2job():
        a(f"""
        s_lshr_b32 s93, s33, 2
        s_and_b32 s94, s33, 3
        s_mov_b32 s92, 0
        s_mov_b32 s97, 12
        s_cmp_lt_u32 s33, 12
        s_cbranch_scc1 L_j{uid[0]}a
        s_sub_u32 s94, s33, 12
        s_mul_i32 s93, s94, 43
        s_lshr_b32 s93, s93, 8
        s_mul_i32 s96, s93, 6
        s_sub_u32 s94, s94, s96
        s_mov_b32 s92, 1
        s_cmp_lt_u32 s33, 27
        s_cbranch_scc1 L_j{uid[0]}a
        s_sub_u32 s93, s33, 27
        s_mov_b32 s94, 4
        s_mov_b32 s92, 0
        s_mov_b32 s97, 16
        s_cmp_lt_u32 s33, 30
        s_cbranch_scc1 L_j{uid[0]}a
        s_mov_b32 s94, s93
        s_mov_b32 s93, 2
        s_mov_b32 s92, 1
        s_cmp_eq_u32 s33, 30
        s_cselect_b32 s97, 20, 16
        L_j{uid[0]}a:
        s_mul_i32 s96, s94, 12
        s_cmp_eq_u32 s33, 31
        s_cselect_b32 s96, 56, s96
        """)
        uid[0] += 1

    stamp(0)
    a(f"""
    s_load_dwordx16 s[4:19], s[0:1], 0
    s_load_dwordx8 s[20:27], s[0:1], 64
    s_load_dwordx4 s[28:31], s[0:1], 96
    v_readfirstlane_b32 s3, v0
    s_cmpk_ge_u32 s2, 256
    s_cbranch_scc1 L_exit
    s_and_b32 s32, s2, 7
    s_lshr_b32 s33, s2, 3
    s_lshr_b32 s35, s33, 4
    s_lshl1_add_u32 s34, s32, s35
    s_and_b32 s35, s33, 15
    s_add_u32 s33, s33, {jrot}
    s_and_b32 s33, s33, 31
    v_lshlrev_b32 v3, 5, v0
    v_and_b32 v0, 63, v0
    s_and_b32 s36, s35, 3
    s_lshr_b32 s37, s35, 2
    s_cmp_lg_u32 s3, 0
    s_cbranch_scc1 L_other0
    s_lshl2_add_u32 s38, s34, s37
    s_mul_i32 s39, s36, {144*64}
    s_add_u32 s39, s39, s38
    s_lshl_b32 s39, s39, 7
    v_lshrrev_b32 v4, 3, v0
    v_mul_u32_u24 v1, {18*8192}, v4
    v_and_b32 v5, 7, v0
    v_lshlrev_b32 v5, 4, v5
    v_add_u32 v1, v1, v5
    s_mov_b32 m0, {L_V}
    s_movk_i32 s40, 17
    s_movk_i32 s41, 0x2000
    s_getreg_b32 s47, hwreg(HW_REG_XCC_ID, 0, 4)
    v_or_b32_e64 v10, 64, s47
    v_mov_b32 v11, s2
    s_waitcnt lgkmcnt(0)
    global_store_byte v11, v10, s[28:29]
    s_add_u32 s10, s10, s39
    s_addc_u32 s11, s11, 0
    L_ldq:
    global_load_lds_dwordx4 v1, s[10:11]{nt}
    v_add_u32 v1, s41, v1
    s_addk_i32 m0, 0x400
    s_sub_u32 s40, s40, 1
    s_cbranch_scc0 L_ldq
    s_branch L_ld2
    L_other0:
    s_getpc_b64 s[58:59]
    global_load_dword v127, v3, s[58:59] offset:-2016
    s_branch L_other
    """)
    a.raw(f".fill (256 - (. - {KNAME})) / 4, 4, 0xbf800000")
    a("L_other:")
    zstamps()
    a(f"""
    v_mov_b32 v2, 0
    s_lshr_b32 s3, s3, 6
    s_cmp_lg_u32 s3, {NWAVES-1}
    s_cbranch_scc1 L_noz
    v_lshlrev_b32 v1, 3, v0
    v_mov_b32 v3, 0
    ds_write_b64 v1, v[2:3]
    s_waitcnt lgkmcnt(0)
    L_noz:
    s_barrier
    """)
    if pf:
        a(f"""
        s_cmp_lg_u32 s3, 4
        s_cbranch_scc1 L_nopf
        s_lshl_b32 s38, s34, 12
        s_lshl_b32 s39, s36, 10
        s_add_u32 s38, s38, s39
        s_lshl_b32 s39, s37, 8
        s_add_u32 s38, s38, s39
        s_lshl_b32 s40, s35, 7
        s_lshl_b32 s41, s34, 11
        s_add_u32 s41, s41, s40
        s_lshl_b32 s42, s34, 14
        s_add_u32 s42, s42, s40
        s_mul_i32 s43, s33, 57
        s_lshr_b32 s43, s43, 9
        s_mul_i32 s45, s43, 9
        s_sub_u32 s45, s33, s45
        s_mul_i32 s45, s45, 2304
        s_mul_i32 s43, s43, 768
        s_add_u32 s43, s43, s45
        s_mul_i32 s45, s32, 20736
        s_add_u32 s43, s43, s45
        s_waitcnt lgkmcnt(0)
        """)
        n = [84]
        def ld(pair, off):
            a(f"s_load_dword s{n[0]}, {pair}, {off}"); n[0] = 84 + (n[0] - 83) % 8
        if 'q' in pf:
            a("s_add_u32 s52, s30, s38\ns_addc_u32 s53, s31, 0")
            for i in range(2): ld("s[52:53]", WS_QP + 128 * i)
        if 'h' in pf:
            a("s_add_u32 s54, s30, s43\ns_addc_u32 s55, s31, 0")
            for i in range(6): ld("s[54:55]", WS_HP + 128 * i)
        if 'o' in pf:
            a("s_add_u32 s56, s30, s41\ns_addc_u32 s57, s31, 0")
            ld("s[56:57]", WS_ST)
            a("s_add_u32 s60, s30, s42\ns_addc_u32 s61, s31, 0")
            for i in range(8): ld("s[60:61]", WS_OP + 2048 * i)
        a("L_nopf:")
    a(f"""
    s_cmp_lt_u32 s33, 27
    s_cselect_b32 s48, 42, 18
    s_add_u32 s80, s48, 64
    s_add_u32 s81, s80, 64
    s_cmp_ge_u32 s3, 3
    s_cbranch_scc1 L_S
    s_cmp_eq_u32 s3, 1
    s_cbranch_scc1 L_Q
    s_branch L_L1
    """)
    def prog():
        a(f"""
        v_mov_b32 v6, s42
        ds_write_b32 v7, v6 offset:{L_PROG}
        """)
    def tile(name, base, W=W, tog=False):
        a(f"""
        {name}:
        s_waitcnt vmcnt({W-1})
        global_load_lds_dwordx4 v1, {base}{nt}
        """)
        prog()
        a(f"""
        s_addk_i32 m0, 896
        s_waitcnt vmcnt({W-1})
        global_load_lds_dwordx4 v1, {base} offset:128{nt}
        s_addk_i32 m0, 896
        s_addk_i32 s42, 2
        s_waitcnt vmcnt({W-1})
        global_load_lds_dwordx4 v1, {base} offset:256{nt}
        """)
        prog()
        a(f"""
        s_addk_i32 s42, 1
        s_addk_i32 m0, 1280
        v_add_u32 v1, s41, v1
        {"v_xor_b32 v1, 64, v1" if tog else ""}
        s_sub_u32 s40, s40, 1
        s_cbranch_scc0 {name}
        """)
    a("L_ld2:")
    zstamps()
    a(f"""
    s_setprio 3
    v_mov_b32 v2, 0
    v_lshlrev_b32 v7, 2, v0
    s_movk_i32 s42, {18 - (W - 1)}
    s_mul_i32 s38, s33, 57
    s_lshr_b32 s38, s38, 9
    s_mul_i32 s39, s38, 9
    s_sub_u32 s39, s33, s39
    s_mul_i32 s39, s39, {64*9216}
    s_mul_i32 s38, s38, 384
    s_add_u32 s39, s39, s38
    s_mul_i32 s38, s32, 1152
    s_add_u32 s39, s39, s38
    s_add_u32 s16, s16, s39
    s_addc_u32 s17, s17, 0
    v_mul_u32_u24 v1, 9216, v4
    v_add_u32 v1, v1, v5
    s_movk_i32 s40, 7
    s_mov_b32 m0, {L_W}
    s_mov_b32 s41, {8*9216}
    s_lshl_b32 s38, s34, 24
    s_lshl_b32 s39, s35, 16
    s_add_u32 s38, s38, s39
    s_add_u32 s38, s38, {61440*256}
    s_add_u32 s6, s6, s38
    s_addc_u32 s7, s7, 0
    s_add_u32 s8, s8, s38
    s_addc_u32 s9, s9, 0
    s_lshl_b32 s43, s35, 12
    v_and_b32 v8, 12, v0
    v_lshlrev_b32 v8, 6, v8
    v_and_b32 v9, 48, v0
    v_lshl_add_u32 v8, v9, 2, v8
    v_and_b32 v9, 3, v0
    v_lshl_add_u32 v8, v9, 4, v8
    v_lshlrev_b32 v9, 4, v0
    v_mul_u32_u24 v10, 1152, v4
    v_add_u32 v10, v10, v5
    {"v_and_b32 v11, 16, v0" if swz else ""}
    {"v_lshlrev_b32 v11, 1, v11" if swz else ""}
    {"v_xor_b32 v10, v10, v11" if swz else ""}
    s_barrier
    """)
    stamp(1)
    l2job()
    a(f"""
    s_cmp_lg_u32 s92, 0
    s_cselect_b32 s12, s20, s12
    s_cselect_b32 s13, s21, s13
    s_cselect_b32 s39, 72, 64
    s_mul_i32 s38, s32, s39
    s_add_u32 s38, s38, s96
    s_mul_i32 s38, s38, 9216
    s_mul_i32 s39, s93, 384
    s_add_u32 s38, s38, s39
    s_add_u32 s12, s12, s38
    s_addc_u32 s13, s13, 0
    s_cmp_ge_u32 s33, 27
    s_cbranch_scc1 L_ldw_done
    """)
    if W1: a(f"s_addk_i32 s42, {W - W1}")
    tile("L_ldw", "s[16:17]", W1 or W)
    if W1: a(f"s_addk_i32 s42, {W1 - W}")
    a(f"""
    L_ldw_done:
    s_mov_b32 m0, {L_K}
    s_movk_i32 s40, 15
    """)
    def quad(name, vlane, base, flag, W=W):
        a(f"""
        {name}:
        ds_read_b32 v3, v2 offset:{flag}
        s_and_b32 s43, s43, 0xffff
        v_add_u32 v1, s43, {vlane}
        """)
        for k in range(4):
            a(f"s_waitcnt vmcnt({W-1})")
            a(f"global_load_lds_dwordx4 v1, {base} offset:{1024*k}{nt}")
            if k == 0: a("s_addk_i32 s42, 1")
            if k == 1: prog()
            if k == 2: a("s_addk_i32 s42, 2")
        prog()
        a(f"""
        s_addk_i32 s42, 1
        s_addk_i32 m0, 0x1000
        s_addk_i32 s43, 0x1000
        s_sub_u32 s40, s40, 1
        s_cbranch_scc0 {name}
        """)
    def gate(name, flag, val):
        a(f"""
        s_waitcnt lgkmcnt(2)
        v_readfirstlane_b32 s44, v3
        s_cmp_ge_u32 s44, {val}
        s_cbranch_scc1 {name}_done
        """)
        spin(name, flag, "ge_u32", val, sreg="s44", sleep=0)
    def seg(name, vlane, base, flag, tr):
        if tr is None:
            quad(name, vlane, base, flag); return
        f0, n, wt = tr
        if f0:
            a(f"s_movk_i32 s40, {f0-1}")
            quad(name + "a", vlane, base, flag)
        a(f"s_movk_i32 s40, {n-1}")
        a(f"s_addk_i32 s42, {W - wt}")
        quad(name + "b", vlane, base, flag, wt)
        a(f"s_addk_i32 s42, {wt - W}")
        a(f"s_movk_i32 s40, {15 - f0 - n}")
        quad(name + "c", vlane, base, flag)
    seg("L_ldk", "v8", "s[6:7]", L_CS1, trk)
    gate("L_ldc1", L_CS1, 1)
    stamp(2)
    a("s_movk_i32 s40, 15")
    seg("L_ldv", "v9", "s[8:9]", L_CSC, trv)
    a(f"""
    s_sub_u32 s40, s97, 1
    s_movk_i32 s41, 9216
    v_mov_b32 v1, v10
    s_mov_b32 m0, {L_K}
    """)
    gate("L_ldc2", L_CSC, 4)
    stamp(3)
    def pause(tag, n, flag, Wp):
        a(f"s_movk_i32 s40, {n//3 - 1}")
        if Wp != W: a(f"s_addk_i32 s42, {W - Wp}")
        tile(f"L_ld3{tag}", "s[12:13]", Wp, tog=swz)
        cur = Wp - 1
        for r in range(n + 20, n - 1, -4):
            if r <= cur:
                a(f"s_waitcnt vmcnt({r})")
                a(f"s_addk_i32 s42, {cur - r}")
                cur = r
                prog()
        a(f"s_addk_i32 s42, {cur - (W2 - 1)}")
        a(f"s_sub_u32 s40, s97, {n//3 + 1}")
        if flag is not None:
            spin(f"L_ldp{tag}", flag, "lg_u32", 0, sreg="s44", sleep=0)
    a("s_cmp_eq_u32 s92, 0")
    a("s_cbranch_scc1 L_ld3o0")
    pause("a", npre, L_PUB, W)
    a("s_branch L_ld3")
    a("L_ld3o0:")
    pause("o", npo, (L_PUB - 4) if early else None, Wo or W)
    tile("L_ld3", "s[12:13]", W2, tog=swz)
    stamp(4)
    rem = W2 - 1
    stops = sorted({r for r in range(rem) if (r >= 16 and r % 2 == 0) or r in (12, 0)}, reverse=True)
    for r in stops:
        a(f"s_waitcnt vmcnt({r})")
        a(f"s_addk_i32 s42, {rem - r}")
        rem = r
        prog()
    stamp(5)
    finish()

    a(f"""
    L_Q:
    s_mul_i32 s38, s36, 288
    v_lshrrev_b32 v3, 3, v0
    v_mul_u32_u24 v3, 36, v3
    v_add_u32 v3, s38, v3
    s_waitcnt lgkmcnt(0)
    global_load_dword v113, v2, s[30:31] sc1
    global_load_dwordx4 v[104:107], v3, s[4:5]
    global_load_dwordx4 v[108:111], v3, s[4:5] offset:16
    global_load_dword v112, v3, s[4:5] offset:32
    """)
    masks()
    a(f"""
    s_mov_b32 s42, 0x01000100
    s_mov_b32 s43, 0x03020302
    s_mov_b32 s46, 0xffffff00
    v_and_b32 v8, 7, v0
    v_lshlrev_b32 v8, 5, v8
    v_and_b32 v9, 16, v0
    v_add_u32 v8, v8, v9
    v_lshrrev_b32 v9, 5, v0
    v_lshl_add_u32 v8, v9, 3, v8
    s_lshl_b32 s44, s34, 12
    s_add_u32 s44, s44, {WS_QP}
    s_lshl_b32 s45, s36, 10
    s_lshl_b32 s47, s37, 8
    s_add_u32 s45, s45, s47
    s_add_u32 s45, s45, s44
    v_add_u32 v8, s45, v8
    v_lshlrev_b32 v11, 4, v0
    v_add_u32 v9, s44, v11
    v_add_u32 v11, {L_V}, v11
    s_waitcnt vmcnt(0)
    v_add_u32 v113, 1, v113
    v_and_b32 v12, 0xff, v113
    ds_write_b32 v2, v113 offset:{L_ENEW}
    """)
    for t in range(18):
        sel = "s42" if (t & 1) == 0 else "s43"
        x = 104 + (t >> 1)
        a(f"v_perm_b32 v10, v{x}, v{x}, {sel}")
        for d in range(4):
            a(f"v_and_b32 v{128+4*t+d}, v10, v{4+d}")
    spin("L_Qw", L_PROG, "ge_i32", 18, sleep=0)
    stamp(1)
    for t in range(12):
        a(f"ds_read_b128 v[{32+4*t}:{35+4*t}], v11 offset:{1024*t}")
    nread = 12
    for t in range(18):
        a(f"s_waitcnt lgkmcnt({nread-1-t})")
        src = "0" if t == 0 else "v[28:31]"
        a(f"{MFMA} v[28:31], v[{128+4*t}:{131+4*t}], v[{32+4*t}:{35+4*t}], {src}")
        if nread < 18:
            a(f"ds_read_b128 v[{32+4*nread}:{35+4*nread}], v11 offset:{1024*nread}")
            nread += 1
    lds_inc(L_CS1)
    spin("L_Ql", L_LOC, "lg_u32", 0, sleep=0)
    a("s_lshr_b32 s82, s40, 1")
    if forcelocal is not None: a(f"s_mov_b32 s82, {forcelocal}")
    a(f"""
    v_permlane32_swap_b32 v28, v30
    v_permlane32_swap_b32 v29, v31
    v_add_f32_dpp v28, v30, v28 row_ror:8 {DPPF}
    v_add_f32_dpp v29, v31, v29 row_ror:8 {DPPF}
    v_and_or_b32 v28, v28, s46, v12
    s_mov_b32 exec_lo, 0x00ff00ff
    s_mov_b32 exec_hi, 0x00ff00ff
    """)
    store2("global_store_dwordx2 v8, v[28:29], s[30:31]")
    a(f"""
    s_mov_b64 exec, -1
    s_lshl_b32 s45, s82, 9
    s_or_b32 s45, s45, 0x100
    v_or_b32 v10, s45, v12
    ds_write_b32 v2, v10 offset:{L_TAU}
    """)
    stamp(2)
    l2job()
    spin("L_Qg", L_PROG, "ge_i32", qgate)
    stamp(3)
    pollhead("L_Qpoll")
    for t in range(4):
        a(f"global_load_dwordx4 v[{32+4*t}:{35+4*t}], v9, s[30:31] offset:{1024*t} sc1")
    a("s_waitcnt vmcnt(0)")
    chk(list(range(32, 48, 2)))
    chkend("L_Qpoll")
    for d in range(0, 4, 2):
        a(f"v_pk_add_f32 v[{32+d}:{33+d}], v[{32+d}:{33+d}], v[{36+d}:{37+d}]")
        a(f"v_pk_add_f32 v[{40+d}:{41+d}], v[{40+d}:{41+d}], v[{44+d}:{45+d}]")
    for d in range(0, 4, 2):
        a(f"v_pk_add_f32 v[{32+d}:{33+d}], v[{32+d}:{33+d}], v[{40+d}:{41+d}]")
    a(f"""
    v_cvt_pk_bf16_f32 v32, v32, v33
    v_cvt_pk_bf16_f32 v33, v34, v35
    v_lshlrev_b32 v8, 3, v0
    v_mov_b32 v26, 1
    ds_write_b64 v8, v[32:33] offset:{L_Q}
    ds_write_b32 v2, v26 offset:{L_FQ}
    """)
    stamp(4)
    GC1 = -2.0 * math.log2(math.e) * math.sqrt(2.0 / math.pi)
    GC3 = GC1 * 0.044715
    a(f"""
    s_cmp_eq_u32 s92, 0
    s_cbranch_scc1 L_O
    s_lshl_b32 s38, s96, 1
    v_add_u32 v8, s38, v0
    s_mul_i32 s39, s32, 1152
    v_lshl_add_u32 v9, v8, 3, s39
    s_mul_i32 s39, s32, {9*2304}
    s_add_u32 s39, s39, {WS_HP + 2304}
    v_and_b32 v13, 0xf0, v8
    v_lshl_add_u32 v13, v13, 4, s39
    v_and_b32 v14, 1, v8
    v_lshl_add_u32 v13, v14, 7, v13
    v_and_b32 v14, 14, v8
    v_lshl_add_u32 v8, v14, 3, v13
    v_add_u32 v13, {3*2304}, v8
    v_add_u32 v14, {6*2304}, v8
    s_add_u32 s47, s80, {hgate}
    """)
    spin("L_Hg", L_PROG, "ge_i32", "s47")
    a(f"""
    s_lshl_b32 s98, s97, 1
    s_bfm_b64 exec, s98, 0
    global_load_dwordx2 v[16:17], v9, s[18:19]
    s_mov_b32 s42, {f2u(GC3)}
    v_mov_b32 v11, {f2u(GC1)}
    """)
    pollhead("L_Hpoll")
    for t in range(9):
        a(f"global_load_dwordx4 v[{32+4*t}:{35+4*t}], {('v8', 'v13', 'v14')[t // 3]}, s[30:31] offset:{2304*(t%3)-2304} sc1")
    a("s_waitcnt vmcnt(0)")
    chk(list(range(32, 68, 2)))
    chkend("L_Hpoll")
    stamp(5)
    for t in range(1, 9):
        for d in range(0, 4, 2):
            a(f"v_pk_add_f32 v[{32+d}:{33+d}], v[{32+d}:{33+d}], v[{32+4*t+d}:{33+4*t+d}]")
    a(f"""
    v_cvt_pk_bf16_f32 v36, v32, v33
    v_cvt_pk_bf16_f32 v37, v34, v35
    """)
    for i in range(4):
        src, bsrc = 36 + (i >> 1), 16 + (i >> 1)
        if i & 1:
            a(f"v_and_b32 v{32+i}, 0xffff0000, v{src}")
            a(f"v_and_b32 v{40+i}, 0xffff0000, v{bsrc}")
        else:
            a(f"v_lshlrev_b32 v{32+i}, 16, v{src}")
            a(f"v_lshlrev_b32 v{40+i}, 16, v{bsrc}")
    steps = [
        "v_add_f32 v{z}, v{z}, v{t}",
        "v_cvt_pk_bf16_f32 v{z}, v{z}, v{z}",
        "v_and_b32 v{z}, 0xffff0000, v{z}",
        "v_mul_f32 v{t}, v{z}, v{z}",
        "v_fma_f32 v{t}, v{t}, s42, v11",
        "v_mul_f32 v{t}, v{t}, v{z}",
        "v_exp_f32 v{t}, v{t}",
        "v_add_f32 v{t}, 1.0, v{t}",
        "v_rcp_f32 v{t}, v{t}",
        "v_mul_f32 v{z}, v{z}, v{t}",
    ]
    for st in steps:
        for i in range(4):
            a(st.format(z=32 + i, t=40 + i))
    a(f"""
    v_cvt_pk_bf16_f32 v32, v32, v33
    v_cvt_pk_bf16_f32 v33, v34, v35
    v_lshlrev_b32 v18, 3, v0
    ds_write_b64 v18, v[32:33] offset:{L_VEC}
    ds_write_b32 v2, v26 offset:{L_FV}
    """)
    stamp(6)
    finish()
    a(f"""
    L_O:
    s_lshr_b32 s38, s96, 2
    s_lshl_b32 s39, s32, 4
    s_add_u32 s39, s39, s38
    s_lshl_b32 s39, s39, 11
    s_add_u32 s39, s39, {WS_OP + 4096}
    v_lshlrev_b32 v9, 4, v0
    v_add_u32 v9, s39, v9
    s_lshl_b32 s39, s32, 12
    s_add_u32 s39, s39, {WS_ST}
    v_and_b32 v8, 15, v0
    v_lshlrev_b32 v8, 7, v8
    v_and_b32 v14, 32, v0
    v_lshl_add_u32 v8, v14, 6, v8
    v_and_b32 v14, 16, v0
    v_add3_u32 v8, v8, v14, s39
    v_lshrrev_b32 v14, 3, v0
    v_lshlrev_b32 v14, 2, v14
    v_and_b32 v18, 3, v0
    v_lshlrev_b32 v18, 4, v18
    v_and_b32 v19, 4, v0
    v_lshl_add_u32 v18, v19, 1, v18
    v_bfe_u32 v19, v0, 4, 1
    v_lshl_add_u32 v18, v19, 2, v18
    v_lshrrev_b32 v19, 5, v0
    v_lshl_add_u32 v18, v19, 1, v18
    s_mov_b32 s41, {f2u(CSC)}
    v_perm_b32 v15, v12, v12, 0
    s_add_u32 s47, s80, {sgate}
    """)
    for m in range(4):
        a(f"""
        s_add_u32 s45, s38, {m}
        s_and_b32 s45, s45, 12
        s_lshl_b32 s45, s45, 4
        v_add_u32 v{72+2*m}, s45, v14
        v_add_u32 v{73+2*m}, 32, v{72+2*m}
        """)
    for r in range(57, 64, 2):
        a(f"v_mov_b32 v{r}, 0")
    spin("L_Og1", L_PROG, "ge_i32", "s47")
    pollhead("L_Spoll")
    a("global_load_dwordx4 v[68:71], v8, s[30:31] sc1")
    a("s_waitcnt vmcnt(0)")
    a(f"""
    v_xor_b32 v10, v68, v15
    v_xor_b32 v11, v70, v15
    v_or_b32 v10, v10, v11
    v_cmp_ne_u32 vcc, 0, v10
    s_cbranch_vccnz L_Spoll
    v_max_f32_dpp v20, v69, v69 row_ror:1 {DPPF}
    v_max_f32_dpp v20, v20, v20 row_ror:2 {DPPF}
    v_max_f32_dpp v20, v20, v20 row_ror:4 {DPPF}
    v_max_f32_dpp v20, v20, v20 row_ror:8 {DPPF}
    v_sub_f32 v20, v69, v20
    v_mul_f32 v20, s41, v20
    v_exp_f32 v20, v20
    v_mul_f32 v21, v20, v71
    v_add_f32_dpp v21, v21, v21 row_ror:1 {DPPF}
    v_add_f32_dpp v21, v21, v21 row_ror:2 {DPPF}
    v_add_f32_dpp v21, v21, v21 row_ror:4 {DPPF}
    v_add_f32_dpp v21, v21, v21 row_ror:8 {DPPF}
    v_rcp_f32 v21, v21
    v_mul_f32 v20, v20, v21
    """)
    for i in range(8):
        a(f"ds_bpermute_b32 v{80+i}, v{72+i}, v20")
    a(f"s_add_u32 s47, s81, {ogate}")
    if early:
        spin("L_Og3", L_PUB, "lg_u32", 0, sleep=0)
        a("s_mov_b32 s51, 0x40000")
        a("s_branch L_Ogo")
        a("L_Opoll:")
        a("s_sub_u32 s51, s51, 1")
        a("s_cbranch_scc1 L_exit")
        spin("L_Og2", L_PROG, "ge_i32", "s47", sleep=0)
        a("L_Ogo:")
    else:
        spin("L_Og2", L_PROG, "ge_i32", "s47", sleep=0)
        pollhead("L_Opoll")
    for r in range(56, 64, 2):
        a(f"v_mov_b32 v{r}, v12")
    a("s_cmp_eq_u32 s97, 12")
    a("s_cbranch_scc1 L_O3")
    for t in range(6, 8):
        a(f"global_load_dwordx4 v[{32+4*t}:{35+4*t}], v9, s[30:31] offset:{1024*t-4096} sc1")
    a("L_O3:")
    for t in range(6):
        a(f"global_load_dwordx4 v[{32+4*t}:{35+4*t}], v9, s[30:31] offset:{1024*t-4096} sc1")
    if early: a(f"ds_write_b32 v2, v26 offset:{L_PUB-4}")
    for i, m in enumerate((3, 0, 1, 2)):
        a(f"s_waitcnt vmcnt({6 - 2*i})")
        chk([32 + 8 * m, 34 + 8 * m, 36 + 8 * m, 38 + 8 * m], first=(i == 0))
        for d in range(0, 4, 2):
            a(f"v_pk_mul_f32 v[{88+4*m+d}:{89+4*m+d}], v[{32+8*m+d}:{33+8*m+d}], v[{80+2*m}:{81+2*m}] op_sel_hi:[1,0]")
        if i == 3:
            a("v_and_b32 v10, 0xff, v10")
        for d in range(0, 4, 2):
            a(f"v_pk_fma_f32 v[{88+4*m+d}:{89+4*m+d}], v[{36+8*m+d}:{37+8*m+d}], v[{80+2*m}:{81+2*m}], v[{88+4*m+d}:{89+4*m+d}] op_sel:[0,1,0]")
        if i == 3:
            a("v_cmp_ne_u32 vcc, 0, v10")
            a("s_cbranch_vccnz L_Opoll")
            stamp(5)
        a(f"v_permlane32_swap_b32 v{88+4*m}, v{89+4*m}")
        a(f"v_permlane32_swap_b32 v{90+4*m}, v{91+4*m}")
        a(f"v_add_f32 v{88+4*m}, v{88+4*m}, v{89+4*m}")
        a(f"v_add_f32 v{90+4*m}, v{90+4*m}, v{91+4*m}")
    for m in (3, 0, 1, 2):
        a(f"v_permlane16_swap_b32 v{88+4*m}, v{90+4*m}")
    for m in (3, 0, 1, 2):
        a(f"v_add_f32 v{88+4*m}, v{88+4*m}, v{90+4*m}")
    for m in (3, 0, 1, 2):
        a(f"v_add_f32_dpp v{88+4*m}, v{88+4*m}, v{88+4*m} row_ror:8 {DPPF}")
    a(f"""
    v_cvt_pk_bf16_f32 v20, v88, v92
    v_cvt_pk_bf16_f32 v21, v96, v100
    ds_write_b16 v18, v20 offset:{L_VEC}
    ds_write_b16_d16_hi v18, v20 offset:{L_VEC+64}
    ds_write_b16 v18, v21 offset:{L_VEC+128}
    ds_write_b16_d16_hi v18, v21 offset:{L_VEC+192}
    ds_write_b32 v2, v26 offset:{L_FV}
    """)
    stamp(6)
    finish()

    a(f"""
    L_S:
    s_sub_u32 s44, s3, 3
    s_cmp_lg_u32 s44, 0
    s_cbranch_scc1 L_Snom
    s_getreg_b32 s47, hwreg(HW_REG_XCC_ID, 0, 4)
    v_or_b32_e64 v14, 64, s47
    v_and_b32 v15, 31, v0
    v_lshl_add_u32 v15, v15, 3, s32
    s_movk_i32 s49, {mkn}
    s_waitcnt lgkmcnt(0)
    L_Smk:
    global_load_ubyte v16, v15, s[28:29] sc1
    s_mov_b32 s45, 2
    s_waitcnt vmcnt(0)
    v_cmp_ne_u32 vcc, v14, v16
    s_cbranch_vccz L_Smk_done
    s_mov_b32 s45, 1
    s_sub_u32 s49, s49, 1
    s_cbranch_scc0 L_Smk
    L_Smk_done:
    v_mov_b32 v14, s45
    ds_write_b32 v2, v14 offset:{L_LOC}
    L_Snom:
    """)
    masks()
    a(f"""
    v_and_b32 v8, 4, v0
    v_lshlrev_b32 v8, 6, v8
    v_and_b32 v9, 48, v0
    v_lshl_add_u32 v8, v9, 2, v8
    v_and_b32 v9, 3, v0
    v_lshl_add_u32 v28, v9, 4, v8
    v_and_b32 v8, 12, v0
    v_lshlrev_b32 v8, 3, v8
    v_and_b32 v9, 16, v0
    v_add_u32 v8, v8, v9
    v_lshrrev_b32 v9, 5, v0
    v_lshl_add_u32 v29, v9, 2, v8
    s_lshl_b32 s45, s44, 7
    s_add_u32 s45, s45, {L_S}
    v_add_u32 v27, s45, v29
    s_lshl_b32 s45, s44, 12
    s_add_u32 s45, s45, {L_K}
    v_lshlrev_b32 v31, 4, v0
    v_add_u32 v30, s45, v31
    v_and_b32 v9, 8, v0
    v_cmp_eq_u32 vcc, 0, v9
    s_lshl2_add_u32 s47, s44, s48
    s_add_u32 s47, s47, 4
    s_movk_i32 s49, 3
    """)
    l2job()
    spin("L_Sq", L_FQ, "lg_u32", 0)
    stamp(1)
    a(f"""
    ds_read_b128 v[12:15], v28 offset:{L_Q}
    ds_read_b32 v3, v2 offset:{L_TAU}
    s_waitcnt lgkmcnt(0)
    v_readfirstlane_b32 s63, v3
    """)
    for d in range(4):
        a(f"v_cndmask_b32 v{8+d}, 0, v{12+d}, vcc")
    for d in range(4):
        a(f"v_cndmask_b32_e64 v{12+d}, v{12+d}, 0, vcc")
    a("L_Sloop:")
    spin("L_Sk", L_PROG, "ge_i32", "s47")
    for c in range(4):
        a(f"ds_read_b128 v[{32+4*c}:{35+4*c}], v30 offset:{1024*c}")
    a(f"""
    v_add_u32 v30, 0x4000, v30
    s_add_u32 s47, s47, 16
    s_waitcnt lgkmcnt(3)
    {MFMA} v[16:19], v[8:11], v[32:35], 0
    s_waitcnt lgkmcnt(2)
    {MFMA} v[16:19], v[12:15], v[36:39], v[16:19]
    s_waitcnt lgkmcnt(1)
    {MFMA} v[20:23], v[8:11], v[40:43], 0
    s_waitcnt lgkmcnt(0)
    {MFMA} v[20:23], v[12:15], v[44:47], v[20:23]
    """)
    for m in range(2):
        a(f"v_mov_b32_dpp v{24+m}, v{16+4*m} quad_perm:[0,0,0,0] {DPPF}")
    for r in range(1, 4):
        for m in range(2):
            a(f"v_add_f32_dpp v{24+m}, v{16+4*m+r}, v{24+m} quad_perm:[{r},{r},{r},{r}] {DPPF}")
    a(f"""
    ds_write2_b32 v27, v24, v25 offset0:0 offset1:2
    v_add_u32 v27, 512, v27
    s_sub_u32 s49, s49, 1
    s_cbranch_scc0 L_Sloop
    """)
    lds_inc(L_CSC)
    stamp(2)
    tau_from("s63")
    a(f"""
    s_add_u32 s45, s44, 3
    s_and_b32 s45, s45, 3
    v_lshrrev_b32 v29, 3, v0
    v_lshlrev_b32 v29, 4, v29
    s_lshl_b32 s47, s45, 7
    v_add_u32 v29, s47, v29
    s_lshl_b32 s47, s45, 12
    s_add_u32 s47, s47, {L_V}
    v_add_u32 v30, s47, v31
    s_lshl2_add_u32 s62, s45, s80
    s_add_u32 s62, s62, 4
    v_mov_b32 v16, 0
    v_mov_b32 v17, 0
    v_mov_b32 v18, 0
    v_mov_b32 v19, 0
    s_movk_i32 s49, 3
    s_cmp_eq_u32 s44, 0
    s_cbranch_scc1 L_SM
    """)
    spin("L_Pp", L_FP, "lg_u32", 0)
    a(f"""
    s_branch L_Ploop
    L_SM:
    s_setprio 2
    s_mov_b32 s41, {f2u(CSC)}
    s_lshl_b32 s45, s34, 11
    s_lshl_b32 s47, s35, 7
    s_add_u32 s45, s45, s47
    s_add_u32 s45, s45, {WS_ST}
    v_lshlrev_b32 v11, 4, v0
    v_add_u32 v11, s45, v11
    v_and_b32 v8, 32, v0
    v_lshlrev_b32 v10, 8, v8
    v_and_b32 v8, 12, v0
    v_lshl_add_u32 v10, v8, 9, v10
    v_and_b32 v8, 16, v0
    v_lshl_add_u32 v10, v8, 2, v10
    v_and_b32 v8, 3, v0
    v_lshl_add_u32 v10, v8, 4, v10
    s_lshl_b32 s45, s34, 14
    s_lshl_b32 s47, s35, 7
    s_add_u32 s45, s45, s47
    s_add_u32 s45, s45, {WS_OP}
    v_add_u32 v10, s45, v10
    """)
    spin("L_Pw", L_CSC, "ge_u32", 4, sleep=0)
    a(f"""
    ds_read_b128 v[32:35], v31 offset:{L_S}
    ds_read_b128 v[36:39], v31 offset:{L_S+1024}
    s_waitcnt lgkmcnt(0)
    v_max3_f32 v13, v32, v33, v34
    v_max3_f32 v14, v35, v36, v37
    v_max3_f32 v13, v13, v38, v39
    v_max_f32 v13, v13, v14
    v_max_f32_dpp v13, v13, v13 quad_perm:[2,3,0,1] {DPPF}
    v_max_f32_dpp v13, v13, v13 row_ror:4 {DPPF}
    v_max_f32_dpp v13, v13, v13 row_ror:8 {DPPF}
    v_mov_b32 v14, v13
    v_permlane16_swap_b32 v14, v13
    v_max_f32 v13, v13, v14
    v_mov_b32 v14, v13
    v_permlane32_swap_b32 v14, v13
    v_max_f32 v13, v13, v14
    v_mul_f32 v14, s41, v13
    """)
    for i in range(8):
        a(f"v_fma_f32 v{32+i}, v{32+i}, s41, -v14")
    for i in range(8):
        a(f"v_exp_f32 v{32+i}, v{32+i}")
    for i in range(8):
        a(f"v_cvt_pk_bf16_f32 v{40+i}, v{32+i}, v{32+i}")
    a(f"""
    ds_write_b128 v31, v[40:43] offset:{L_S}
    ds_write_b128 v31, v[44:47] offset:{L_S+1024}
    v_mov_b32 v15, 1
    ds_write_b32 v2, v15 offset:{L_FP}
    v_add_f32 v32, v32, v33
    v_add_f32 v34, v34, v35
    v_add_f32 v36, v36, v37
    v_add_f32 v38, v38, v39
    v_add_f32 v32, v32, v34
    v_add_f32 v36, v36, v38
    v_add_f32 v14, v32, v36
    v_add_f32_dpp v14, v14, v14 quad_perm:[2,3,0,1] {DPPF}
    v_add_f32_dpp v14, v14, v14 row_ror:4 {DPPF}
    v_add_f32_dpp v14, v14, v14 row_ror:8 {DPPF}
    v_mov_b32 v15, v14
    v_permlane16_swap_b32 v15, v14
    v_add_f32 v14, v14, v15
    v_mov_b32 v15, v14
    v_permlane32_swap_b32 v15, v14
    v_add_f32 v14, v14, v15
    v_perm_b32 v20, v12, v12, 0
    v_mov_b32 v21, v13
    v_mov_b32 v22, v20
    v_mov_b32 v23, v14
    s_mov_b64 exec, 3
    """)
    store2("global_store_dwordx4 v11, v[20:23], s[30:31]")
    a("s_mov_b64 exec, -1")
    stamp(3)
    a(f"""
    L_Ploop:
    ds_read_b128 v[24:27], v29 offset:{L_S}
    v_add_u32 v29, 512, v29
    s_waitcnt lgkmcnt(0)
    """)
    for c in range(4):
        for d in range(4):
            a(f"v_and_b32 v{48+4*c+d}, v{24+c}, v{4+d}")
    spin("L_Pv", L_PROG, "ge_i32", "s62", sleep=0)
    for c in range(4):
        a(f"ds_read_b128 v[{32+4*c}:{35+4*c}], v30 offset:{1024*c}")
    a(f"""
    v_add_u32 v30, 0x4000, v30
    s_add_u32 s62, s62, 16
    """)
    for c in range(4):
        a(f"s_waitcnt lgkmcnt({3-c})")
        a(f"{MFMA} v[16:19], v[{48+4*c}:{51+4*c}], v[{32+4*c}:{35+4*c}], v[16:19]")
    a(f"""
    s_sub_u32 s49, s49, 1
    s_cbranch_scc0 L_Ploop
    s_cmp_eq_u32 s44, 0
    s_cbranch_scc1 L_Pfin
    s_lshl_b32 s45, s44, 10
    v_add_u32 v8, s45, v31
    ds_write_b128 v8, v[16:19] offset:{L_OW-1024}
    """)
    lds_inc(L_CPV)
    a("s_branch L_L2")
    a("L_Pfin:")
    stamp(4)
    spin("L_Pc", L_CPV, "ge_u32", 3, sleep=0,
         extra="\n".join(f"ds_read_b128 v[{32+4*w}:{35+4*w}], v31 offset:{L_OW+1024*w}" for w in range(3)))
    for d in range(0, 4, 2):
        a(f"v_pk_add_f32 v[{16+d}:{17+d}], v[{16+d}:{17+d}], v[{32+d}:{33+d}]")
        a(f"v_pk_add_f32 v[{36+d}:{37+d}], v[{36+d}:{37+d}], v[{40+d}:{41+d}]")
    for d in range(0, 4, 2):
        a(f"v_pk_add_f32 v[{16+d}:{17+d}], v[{16+d}:{17+d}], v[{36+d}:{37+d}]")
    for r in (0, 2):
        a(f"v_and_or_b32 v{16+r}, v{16+r}, s46, v12")
    store2("global_store_dwordx4 v10, v[16:19], s[30:31]")
    a(f"ds_write_b32 v2, v3 offset:{L_PUB}")
    stamp(5)
    finish()

    a(f"""
    L_L2:
    s_sub_u32 s44, s44, 1
    s_lshr_b32 s95, s97, 2
    s_sub_u32 s95, s95, 1
    v_lshrrev_b32 v8, 4, v0
    v_mul_u32_u24 v1, 3072, v8
    v_and_b32 v9, 12, v0
    v_lshl_add_u32 v1, v9, 5, v1
    v_and_b32 v9, 3, v0
    v_lshl_add_u32 v1, v9, 3, v1
    s_lshl_b32 s45, s44, 10
    s_add_u32 s45, s45, {L_K}
    v_add_u32 v1, s45, v1
    s_mul_i32 s45, s95, 12288
    v_add_u32 v14, s45, v1
    """)
    if swz:
        a("v_and_b32 v9, 24, v0")
        a("v_lshlrev_b32 v9, 2, v9")
        for G_ in range(4):
            a(f"v_xor_b32 v10, {32*G_}, v9")
            a(f"v_add_u32 v{20+G_}, v10, v1")
            a(f"v_add_u32 v{24+G_}, v10, v14")
    a(f"""
    v_lshlrev_b32 v30, 4, v8
    s_lshl_b32 s45, s95, 6
    v_add_u32 v31, s45, v30
    s_mul_i32 s47, s93, 3
    s_add_u32 s47, s47, s44
    s_lshl_b32 s47, s47, 1
    v_bfe_u32 v8, v0, 3, 1
    v_add_u32 v8, s47, v8
    v_and_b32 v10, 7, v8
    v_cmp_eq_u32 s[84:85], s32, v10
    v_lshlrev_b32 v8, 14, v8
    v_and_b32 v9, 7, v0
    v_lshl_add_u32 v8, v9, 4, v8
    s_lshl3_add_u32 s38, s92, s94
    s_lshl3_add_u32 s38, s38, s32
    s_lshl_b32 s38, s38, 7
    s_add_u32 s38, s38, {WS_FP}
    v_add_u32 v13, s38, v8
    s_cmp_lg_u32 s82, 0
    s_cselect_b32 s84, s84, 0
    {'' if finlocal else 's_mov_b32 s84, 0'}
    s_and_b32 s84, s84, 0xffff
    s_xor_b32 s85, s84, 0xffff
    s_add_u32 s47, s81, 12
    """)
    BREG = lambda sl, G_: 40 + 16 * sl + 4 * G_
    AREG = lambda sl: 168 + 4 * sl
    DREG = lambda G_: 140 + 4 * G_
    def rd(sl):
        base, off = ("v14", 0) if sl == 0 else ("v1", 12288 * (sl - 1))
        for G_ in range(4):
            for hf in range(2):
                r = BREG(sl, G_) + 2 * hf
                if swz:
                    a(f"ds_read_b64_tr_b16 v[{r}:{r+1}], v{(24 if sl == 0 else 20)+G_} offset:{off + 512*hf}")
                else:
                    a(f"ds_read_b64_tr_b16 v[{r}:{r+1}], {base} offset:{off + 32*G_ + 512*hf}")
    def mm(sl, first=False):
        for G_ in range(4):
            c = "0" if first else f"v[{DREG(G_)}:{DREG(G_)+3}]"
            a(f"{MFMA} v[{DREG(G_)}:{DREG(G_)+3}], v[{AREG(sl)}:{AREG(sl)+3}], v[{BREG(sl,G_)}:{BREG(sl,G_)+3}], {c}")
    vecrd = "\n".join([f"ds_read_b128 v[{AREG(0)}:{AREG(0)+3}], v31 offset:{L_VEC}"] +
                      [f"ds_read_b128 v[{AREG(sl)}:{AREG(sl)+3}], v30 offset:{L_VEC+64*(sl-1)}" for sl in range(1, 3 if light else 5)])
    for sl in range(1, 5):
        if sl >= 3:
            a(f"s_cmp_lt_u32 s95, {sl}")
            a("s_cbranch_scc1 L_2r")
        spin(f"L_2a{sl}", L_PROG, "ge_i32", "s47")
        rd(sl)
        a("s_add_u32 s47, s47, 12")
    a("L_2r:")
    stamp(3)
    a(f"""
    s_mov_b32 s49, 0
    s_mov_b32 s50, 0x400000
    L_2b:
    ds_read_b32 v3, v2 offset:{L_FV}
    {vecrd}
    ds_read_b32 v29, v2 offset:{L_PROG}
    s_waitcnt lgkmcnt(0)
    v_readfirstlane_b32 s40, v3
    v_readfirstlane_b32 s41, v29
    s_cmp_lg_u32 s40, 0
    s_cbranch_scc1 L_2v_done
    s_cmp_ge_i32 s41, s47
    s_cbranch_scc1 L_2b_done
    s_sub_u32 s50, s50, 1
    s_cbranch_scc0 L_2b
    s_endpgm
    L_2b_done:
    s_mov_b32 s49, 1
    """)
    stamp(4)
    rd(0)
    spin("L_2v", L_FV, "lg_u32", 0, sleep=0, extra=vecrd)
    stamp(5)
    if light:
        for sl in (3, 4):
            a(f"ds_read_b128 v[{AREG(sl)}:{AREG(sl)+3}], v30 offset:{L_VEC+64*(sl-1)}")
    mm(1, first=True); mm(2)
    a("s_cmp_lt_u32 s95, 3")
    a("s_cbranch_scc1 L_2m")
    if light: a("s_waitcnt lgkmcnt(0)")
    mm(3)
    a("s_cmp_lt_u32 s95, 4")
    a("s_cbranch_scc1 L_2m")
    mm(4)
    a("""
    L_2m:
    s_cmp_lg_u32 s49, 0
    s_cbranch_scc1 L_2last
    """)
    spin("L_2c", L_PROG, "ge_i32", "s47", sleep=0)
    stamp(4)
    rd(0)
    a("L_2last:")
    for G_ in range(4):
        a(f"s_waitcnt lgkmcnt({6-2*G_})")
        a(f"{MFMA} v[{DREG(G_)}:{DREG(G_)+3}], v[{AREG(0)}:{AREG(0)+3}], v[{BREG(0,G_)}:{BREG(0,G_)+3}], v[{DREG(G_)}:{DREG(G_)+3}]")
    a(f"""
    s_mov_b32 exec_hi, 0
    v_and_or_b32 v16, v{DREG(0)}, s46, v12
    v_mov_b32 v17, v{DREG(1)}
    v_and_or_b32 v18, v{DREG(2)}, s46, v12
    v_mov_b32 v19, v{DREG(3)}
    s_mov_b32 exec_lo, s85
    global_store_dwordx4 v13, v[16:19], s[30:31] sc1
    s_mov_b32 exec_lo, s84
    s_cbranch_execz L_pub3
    global_store_dwordx4 v13, v[16:19], s[30:31]
    L_pub3:
    """)
    stamp(6)
    a("L_fin:")
    finish()

    a(f"""
    L_L1:
    s_cmp_ge_u32 s33, 27
    s_cbranch_scc1 L_R
    s_mul_i32 s38, s33, 57
    s_lshr_b32 s38, s38, 9
    s_mul_i32 s39, s38, 9
    s_sub_u32 s39, s33, s39
    v_lshrrev_b32 v8, 3, v0
    v_and_b32 v9, 3, v0
    v_lshl_add_u32 v8, v9, 3, v8
    v_lshlrev_b32 v8, 1, v8
    s_lshl_b32 s45, s39, 7
    v_add_u32 v8, s45, v8
    s_waitcnt lgkmcnt(0)
    global_load_ushort v28, v8, s[4:5]
    global_load_ushort v29, v8, s[4:5] offset:64
    """)
    masks()
    a(f"""
    s_mul_i32 s45, s32, 20736
    s_mul_i32 s47, s39, 2304
    s_add_u32 s45, s45, s47
    s_mul_i32 s47, s38, 768
    s_add_u32 s45, s45, s47
    s_add_u32 s45, s45, {WS_HP}
    v_bfe_u32 v8, v0, 4, 2
    v_and_b32 v10, 8, v0
    v_lshrrev_b32 v10, 1, v10
    v_add_u32 v8, v8, v10
    v_lshlrev_b32 v8, 7, v8
    v_and_b32 v9, 7, v0
    v_lshl_add_u32 v8, v9, 4, v8
    v_add_u32 v13, s45, v8
    v_lshlrev_b32 v1, 4, v0
    v_add_u32 v1, {L_W}, v1
    """)
    for i in range(12):
        a(f"v_mov_b32 v{16+i}, 0")
    a("""
    s_waitcnt vmcnt(0)
    v_lshl_or_b32 v28, v28, 16, v28
    v_lshl_or_b32 v29, v29, 16, v29
    s_movk_i32 s49, 1
    """)
    spin("L_1t", L_TAU, "lg_u32", 0)
    tau_from("s40")
    spin("L_1w", L_PROG, "ge_i32", 42)
    stamp(1)
    a("L_1loop:")
    for n in range(12):
        a(f"ds_read_b128 v[{32+4*n}:{35+4*n}], v1 offset:{1024*n}")
    for rg in range(4):
        for d in range(4):
            a(f"v_and_b32_dpp v{92+4*rg+d}, v28, v{4+d} quad_perm:[{rg},{rg},{rg},{rg}] {DPPF}")
        a(f"s_waitcnt lgkmcnt({9-3*rg})")
        for k in range(3):
            a(f"{MFMA} v[{16+4*k}:{19+4*k}], v[{92+4*rg}:{95+4*rg}], v[{32+12*rg+4*k}:{35+12*rg+4*k}], v[{16+4*k}:{19+4*k}]")
    a(f"""
    v_mov_b32 v28, v29
    v_add_u32 v1, {12*1024}, v1
    s_sub_u32 s49, s49, 1
    s_cbranch_scc0 L_1loop
    """)
    stamp(2)
    for r in range(4):
        a(f"v_permlane32_swap_b32 v{16+r}, v{20+r}")
    for r in range(4):
        a(f"v_mov_b32 v{8+r}, v{24+r}")
    for r in range(4):
        a(f"v_add_f32_dpp v{16+r}, v{20+r}, v{16+r} row_ror:8 {DPPF}")
    for r in range(4):
        a(f"v_permlane32_swap_b32 v{8+r}, v{24+r}")
    for r in range(4):
        a(f"v_add_f32_dpp v{16+r}, v{8+r}, v{24+r} row_ror:8 row_mask:0xf bank_mask:0xc")
    for r in (0, 2):
        a(f"v_and_or_b32 v{16+r}, v{16+r}, s46, v12")
    a("s_mov_b32 exec_hi, 0x00ff00ff")
    store2("global_store_dwordx4 v13, v[16:19], s[30:31]")
    a("s_mov_b32 exec_hi, -1")
    stamp(6)

    parts = 8 // G
    lg = {1: 0, 2: 1, 4: 2, 8: 3}
    a(f"""
    L_R:
    s_sub_u32 s38, 31, s33
    s_and_b32 s39, s38, {parts-1}
    s_lshr_b32 s36, s38, {lg[parts]}
    s_lshl3_add_u32 s36, s36, s32
    s_cmp_ge_u32 s36, 18
    s_cbranch_scc1 L_fin
    s_lshr_b32 s37, s36, 1
    s_lshl_b32 s37, s37, 6
    s_and_b32 s38, s36, 1
    s_lshl3_add_u32 s37, s38, s37
    s_lshl_b32 s45, s39, {lg[G]}
    v_and_b32 v4, {G-1}, v0
    v_add_u32 v4, s45, v4
    v_and_b32 v9, 48, v0
    v_add3_u32 v8, v4, v9, s37
    v_lshlrev_b32 v8, 1, v8
    v_lshlrev_b32 v3, 2, v0
    v_mov_b32 v20, 0
    v_mov_b32 v25, 0
    s_waitcnt lgkmcnt(0)
    global_load_ushort v9, v8, s[22:23]
    """)
    for i in range(4):
        a(f"global_load_dword v{16+i}, v3, s[4:5] offset:{256*i}")
        a(f"global_load_dword v{21+i}, v3, s[24:25] offset:{256*i}")
    a(f"""
    s_mov_b32 exec_hi, 0
    global_load_dword v20, v3, s[4:5] offset:1024
    global_load_dword v25, v3, s[24:25] offset:1024
    s_mov_b32 exec_hi, -1
    s_lshl_b32 s38, s36, 14
    s_add_u32 s38, s38, {WS_FP + 4096}
    v_lshrrev_b32 v1, {lg[G]}, v0
    v_lshlrev_b32 v1, 7, v1
    v_lshl_add_u32 v1, v4, 4, v1
    v_add_u32 v26, s38, v1
    v_add_u32 v27, 0x2000, v26
    v_mov_b32 v10, 0
    v_mov_b32 v11, 0x3f803f80
    s_waitcnt vmcnt(0)
    """)
    for i in range(5):
        a(f"""
        v_lshlrev_b32 v12, 16, v{16+i}
        v_and_b32 v13, 0xffff0000, v{16+i}
        v_lshlrev_b32 v14, 16, v{21+i}
        v_and_b32 v15, 0xffff0000, v{21+i}
        v_mul_f32 v12, v12, v14
        v_mul_f32 v13, v13, v15
        v_cvt_pk_bf16_f32 v12, v12, v13
        v_dot2c_f32_bf16 v10, v12, v11
        """)
    a(f"""
    v_add_f32_dpp v10, v10, v10 row_ror:1 {DPPF}
    v_add_f32_dpp v10, v10, v10 row_ror:2 {DPPF}
    v_add_f32_dpp v10, v10, v10 row_ror:4 {DPPF}
    v_add_f32_dpp v10, v10, v10 row_ror:8 {DPPF}
    v_mov_b32 v11, v10
    v_permlane16_swap_b32 v11, v10
    v_add_f32 v10, v10, v11
    v_mov_b32 v11, v10
    v_permlane32_swap_b32 v11, v10
    v_add_f32 v10, v10, v11
    v_cvt_pk_bf16_f32 v10, v10, v10
    v_and_b32 v10, 0xffff0000, v10
    v_mul_f32 v10, {f2u(-math.log2(math.e))}, v10
    v_exp_f32 v10, v10
    v_add_f32 v10, 1.0, v10
    v_rcp_f32 v10, v10
    v_cvt_pk_bf16_f32 v10, v10, v10
    v_and_b32 v5, 0xffff0000, v10
    v_sub_f32 v6, 1.0, v5
    v_cvt_pk_bf16_f32 v6, v6, v6
    v_and_b32 v6, 0xffff0000, v6
    v_lshlrev_b32 v7, 16, v9
    """)
    spin("L_Rt", L_TAU, "lg_u32", 0, vreg="v12", extra=f"ds_read_b32 v13, v2 offset:{L_ENEW}")
    PL = 64 // G
    NA = -(-40 // PL); NB = -(-48 // PL)
    def cnt(t, n): return max(0, min(PL, n - t * PL)) * G
    def m64(n): return (1 << n) - 1
    a("v_and_b32 v12, 0xff, v12")
    part = [32 + 4 * t for t in range(NA) if cnt(t, 40) < 64] + [64 + 4 * t for t in range(NB) if cnt(t, 40) < 64]
    for r in part:
        a(f"v_mov_b32 v{r+1}, 0"); a(f"v_mov_b32 v{r+3}, 0")
    tl = NB - 1
    assert all(cnt(t, 40) == 64 for t in range(tl))
    a(f"""
    s_cmp_ge_u32 s36, 12
    s_cselect_b32 s45, {cnt(tl, 40)}, {cnt(tl, 48) % 64}
    s_bfm_b64 s[52:53], s45, 0
    {"s_cselect_b64 s[52:53], s[52:53], -1" if cnt(tl, 48) == 64 else ""}
    s_or_b32 s36, s36, s39
    s_add_u32 s47, s81, {rgate}
    """)
    spin("L_Rg", L_PROG, "ge_i32", "s47")
    if sent is not None:
        a(f"""
        s_lshl_b32 s45, s32, 7
        s_add_u32 s45, s45, s38
        v_lshlrev_b32 v30, 10, v0
        v_add_u32 v30, s45, v30
        s_mov_b64 exec, 31
        """)
        pollhead("L_Rsent")
        a(f"""
        global_load_dword v31, v30, s[30:31] offset:-4096 sc1
        s_waitcnt vmcnt(0)
        v_xor_b32 v10, v31, v12
        v_and_b32 v10, 0xff, v10
        v_cmp_ne_u32 vcc, 0, v10
        s_bcnt1_i32_b64 s45, vcc
        s_cmp_gt_u32 s45, {sent}
        s_cbranch_scc1 L_Rsent
        s_mov_b64 exec, -1
        """)
    stamp(4)
    loads = []
    for t in range(NB):
        loads.append((64 + 4 * t, "v27", t, "s[52:53]" if t == tl else None))
    for t in range(NA):
        c = cnt(t, 40)
        loads.append((32 + 4 * t, "v26", t, None if c == 64 else c))
    assert rdepth == 1 or cnt(tl, 40) != 0
    assert rdepth == 1 and G >= 2
    def rloads():
        for r in part:
            a(f"v_mov_b32 v{r}, v12"); a(f"v_mov_b32 v{r+2}, v12")
        for r, base, t, ex in loads:
            if isinstance(ex, str):
                a(f"s_mov_b64 exec, {ex}")
                if cnt(tl, 40) == 0: a("s_cbranch_execz L_Rskip")
            elif ex is not None:
                a(f"s_bfm_b64 exec, {ex}, 0")
            a(f"global_load_dwordx4 v[{r}:{r+3}], {base}, s[30:31] offset:{128*PL*t-4096} sc1")
            if isinstance(ex, str) and cnt(tl, 40) == 0: a("L_Rskip:")
            if ex is not None: a("s_mov_b64 exec, -1")
    for d in range(rdepth - 1):
        rloads()
        a(f"s_sleep {rstag}")
    pollhead("L_Rpoll")
    rloads()
    cd = (0, 1, 2, 3)
    first = True
    nl = len(loads)
    for i, (r, base, t, ex) in enumerate(loads):
        wait = rdepth * nl - 1 - i
        if cnt(tl, 40) == 0 and i < tl: wait = max(0, wait - 1)
        a(f"s_waitcnt vmcnt({wait})")
        chk([r, r + 2], first=first); first = False
        acc = 100 if base == "v27" else 96
        n_ = NB if base == "v27" else NA
        if t == 0:
            if n_ == 1:
                for d in range(4): a(f"v_mov_b32 v{acc+d}, v{r+d}")
            continue
        for d in range(0, 4, 2):
            f_ = (r - 4) if t == 1 else acc
            a(f"v_pk_add_f32 v[{acc+d}:{acc+d+1}], v[{f_+d}:{f_+d+1}], v[{r+d}:{r+d+1}]")
    chkend("L_Rpoll")
    stamp(3)
    for e in range(4):
        a(f"v_permlane32_swap_b32 v{96+e}, v{100+e}")
    for e in range(4):
        a(f"v_add_f32 v{104+e}, v{96+e}, v{100+e}")
    a(f"""
    v_permlane16_swap_b32 v104, v105
    v_permlane16_swap_b32 v106, v107
    v_add_f32 v104, v104, v105
    v_add_f32 v106, v106, v107
    """)
    for r in (8, 4, 2, 1):
        if r >= G:
            a(f"v_add_f32_dpp v104, v104, v104 row_ror:{r} {DPPF}")
            a(f"v_add_f32_dpp v106, v106, v106 row_ror:{r} {DPPF}")
    a(f"""
    v_permlane32_swap_b32 v104, v106
    v_cvt_pk_bf16_f32 v104, v104, v106
    v_and_b32 v106, 0xffff0000, v104
    v_lshlrev_b32 v104, 16, v104
    v_add_f32 v106, v106, v7
    v_mul_f32 v104, v104, v5
    v_cvt_pk_bf16_f32 v106, v106, v106
    v_and_b32 v106, 0xffff0000, v106
    v_mul_f32 v106, v106, v6
    v_cvt_pk_bf16_f32 v104, v104, v106
    v_and_b32 v106, 0xffff0000, v104
    v_lshlrev_b32 v104, 16, v104
    v_add_f32 v104, v104, v106
    v_cvt_pk_bf16_f32 v104, v104, v104
    s_mov_b32 exec_lo, {((1 << G) - 1) * 0x10001}
    s_mov_b32 exec_hi, {((1 << G) - 1) * 0x10001}
    global_store_short v8, v104, s[26:27]
    s_cmp_lg_u32 s36, 0
    s_cbranch_scc1 L_fin
    s_mov_b64 exec, 1
    global_store_dword v2, v13, s[30:31] sc1
    """)
    finish()
    if stamps:
        a(f"""
        L_stamp_out:
        s_memrealtime s[78:79]
        s_mov_b64 exec, 1
        s_waitcnt lgkmcnt(0)
        s_lshl_b32 s60, s2, 4
        s_add_u32 s60, s60, s3
        s_lshl_b32 s60, s60, 5
        s_add_u32 s60, s60, {WS_DBG}
        v_mov_b32 v1, s60
        """)
        for i in range(8):
            a(f"v_mov_b32 v{160+i}, s{64+2*i}")
        a("""
        global_store_dwordx4 v1, v[160:163], s[30:31]
        global_store_dwordx4 v1, v[164:167], s[30:31] offset:16
        """)
    a("L_exit:")
    a("s_endpgm")
    a.raw("L_codeend:")
    a.raw(f".fill ({CODE_PF} - (L_codeend - {KNAME})) / 4, 4, 0xbf800000")
    a.raw('.section .rodata,"a"')
    a.raw(".p2align 6")
    a.raw(f".amdhsa_kernel {KNAME}")
    a.raw("  .amdhsa_next_free_vgpr 200")
    a.raw("  .amdhsa_next_free_sgpr 100")
    a.raw("  .amdhsa_accum_offset 200")
    a.raw("  .amdhsa_group_segment_fixed_size 0")
    a.raw("  .amdhsa_kernarg_size 112")
    a.raw("  .amdhsa_user_sgpr_count 2")
    a.raw("  .amdhsa_user_sgpr_kernarg_segment_ptr 1")
    a.raw("  .amdhsa_system_sgpr_workgroup_id_x 1")
    a.raw(".end_amdhsa_kernel")
    t = a.text()
    for key, lab in (("q", "L_Qpoll"), ("h", "L_Hpoll"), ("s", "L_Spoll"), ("o", "L_Opoll")):
        i0 = t.index(lab + ":"); i1 = t.index("s_cbranch_vccnz " + lab, i0)
        body = t[i0:i1]
        if key in nop:
            body = re.sub(r"    global_load[^\n]*\n", "", body)
            t = t[:i0] + body + t[i1:].replace("s_cbranch_vccnz " + lab, "s_nop 0", 1)
        elif pol is not None:
            t = t[:i0] + body.replace(" sc1\n", pol + "\n") + t[i1:]
    return t

E = dict(G=4, npre=15, W2=30, ogate=24, early=True, W=21)
N = dict(E, sent=None, rgate=36)
N = dict(N, ogate=16)
F = dict(N, npo=18)
V = {
    'k53': dict(F),
    'k53_a12': dict(F, npre=12),
    'k53_a18': dict(F, npre=18),
    'k53_w26': dict(F, W2=26),
    'k53_w34': dict(F, W2=34),
    'k53_g20': dict(F, ogate=20),
    'k53_g2': dict(F, G=2),
    'k53_s4': dict(F, sent=4, rgate=27),
    'k53_W22': dict(F, W=22),
    'k53_o21': dict(F, W=22, npo=21),
}
if __name__ == "__main__":
    for n, kw in V.items():
        open(f'gen/{n}.s', 'w').write(gen(**kw))
        open(f'gen/{n}_st.s', 'w').write(gen(stamps=True, **kw))
```

```python
import sys
sys.path.insert(0, 'gen')
import gen53 as g
kw = dict(g.F, W=22, W2=32)
t = g.gen(**kw)
doc = """;
"""
key = '.amdgcn_target "amdgcn-amd-amdhsa--gfx950"\n'
open('final2.s', 'w').write(t.replace(key, doc + key, 1))
open('k54_st.s', 'w').write(g.gen(stamps=True, **kw))
open('k54_glob.s', 'w').write(g.gen(forcelocal=0, **kw))
```

```python
import sys, math, struct, re
from asmlib import Asm
KNAME = "gated_mix__sliding_block_cached__dense_activation_gelu__decode_kernel"

WS_QP = 0x1000
WS_ST = 0x18000
WS_OP = 0x20000
WS_HP = 0x60000
WS_FP = 0x90000
WS_DBG = 0x200000
L_TAU, L_FQ, L_CSC, L_CS1, L_FV, L_ENEW, L_FP, L_CPV, L_LOC, L_PUB = 0, 4, 8, 12, 16, 20, 24, 28, 32, 40
L_PROG = 256
L_Q = 512
L_S = 1024
L_P = 3072
L_VEC = 6144
L_K = 7168
L_V = L_K + 65536
L_W = L_V + 65536
LDS_BYTES = L_W + 24576
NWAVES = 7
def f2u(f): return struct.unpack('<I', struct.pack('<f', f))[0]
CSC = (128 ** -0.5) * math.log2(math.e)
DPPF = "row_mask:0xf bank_mask:0xf"
CODE_PF = 12672
MFMA = "v_mfma_f32_16x16x32_bf16"

def gen(stamps=False, W=22, jrot=15, G=4, ogate=10, sgate=32, qgate=60, hgate=0, rgate=27, sent=2, forcelocal=None, mkn=2, rdepth=1, rstag=7, npre=None, W2=None, early=False, trk=None, trv=None, pf='', pol=None, nop='', finlocal=True, W1=None, swz=True, light=True, npo=15, Wo=None, rmask=0, pad=False, lean=0):
    W2 = W2 or W
    nt = " nt"
    a = Asm()
    hdr = open('gated_mix__sliding_block_cached__dense_activation_gelu__decode.s.ref').read().split('\n')
    for l in hdr:
        if l.startswith('; @launch'): break
        a.raw(l)
    a.raw(f"; @launch grid=(256,1,1) block=({NWAVES*64},1,1) lds={LDS_BYTES}")
    a.raw('.amdgcn_target "amdgcn-amd-amdhsa--gfx950"')
    a.raw(".text")
    a.raw(f".globl {KNAME}")
    a.raw(".p2align 8")
    a.raw(f".type {KNAME},@function")
    a.raw(f"{KNAME}:")
    def stamp(i):
        if stamps:
            a(f"s_memrealtime s[{64+2*i}:{65+2*i}]")
    def zstamps():
        if stamps:
            for i in range(1, 8):
                a(f"s_mov_b64 s[{64+2*i}:{65+2*i}], 0")
    def finish():
        a("s_branch L_stamp_out" if stamps else "s_endpgm")
    def spin(name, off, cmpop, val, sreg="s40", vreg="v3", sleep=1, extra=""):
        a(f"""
        s_mov_b32 s50, 0x400000
        {name}:
        ds_read_b32 {vreg}, v2 offset:{off}
        {extra}
        s_waitcnt lgkmcnt(0)
        v_readfirstlane_b32 {sreg}, {vreg}
        s_cmp_{cmpop} {sreg}, {val}
        s_cbranch_scc1 {name}_done
        {f"s_sleep {sleep}" if sleep else ""}
        s_sub_u32 s50, s50, 1
        s_cbranch_scc0 {name}
        s_endpgm
        {name}_done:
        """)
    def masks():
        a("""
        v_and_b32 v8, 1, v0
        v_lshlrev_b32 v8, 4, v8
        v_mov_b32 v9, 0xffff
        v_lshlrev_b32 v8, v8, v9
        v_bfe_u32 v9, v0, 1, 2
        v_cmp_eq_u32 vcc, 0, v9
        v_cmp_eq_u32 s[52:53], 1, v9
        v_cmp_eq_u32 s[54:55], 2, v9
        v_cmp_eq_u32 s[56:57], 3, v9
        v_cndmask_b32 v4, 0, v8, vcc
        v_cndmask_b32 v5, 0, v8, s[52:53]
        v_cndmask_b32 v6, 0, v8, s[54:55]
        v_cndmask_b32 v7, 0, v8, s[56:57]
        """)
    def lds_inc(off, vone="v3"):
        a(f"""
        v_mov_b32 {vone}, 1
        s_mov_b64 exec, 1
        ds_add_u32 v2, {vone} offset:{off}
        s_mov_b64 exec, -1
        """)
    def pollhead(name):
        a(f"""
        s_mov_b32 s50, 0x40000
        {name}:
        s_sub_u32 s50, s50, 1
        s_cbranch_scc1 L_exit
        """)
    def chk(regs, acc="v10", first=True):
        for i in range(0, len(regs), 2):
            a(f"v_xor_b32 v{regs[i]}, v{regs[i]}, v12")
            a(f"v_xor_b32 v{regs[i+1]}, v{regs[i+1]}, v12")
            if first: a(f"v_or_b32 {acc}, v{regs[i]}, v{regs[i+1]}"); first = False
            else: a(f"v_or3_b32 {acc}, {acc}, v{regs[i]}, v{regs[i+1]}")
    def chkend(label, acc="v10"):
        a(f"""
        v_and_b32 {acc}, 0xff, {acc}
        v_cmp_ne_u32 vcc, 0, {acc}
        s_cbranch_vccnz {label}
        """)
    uid = [0]
    def store2(ins):
        uid[0] += 1
        u = uid[0]
        a(f"""
        s_cmp_lg_u32 s82, 0
        s_cbranch_scc1 L_t{u}a
        {ins} sc1
        s_branch L_t{u}b
        L_t{u}a:
        {ins}
        L_t{u}b:
        """)
    def tau_from(sreg):
        a(f"""
        s_bfe_u32 s82, {sreg}, 0x10009
        s_and_b32 s45, {sreg}, 0xff
        v_mov_b32 v12, s45
        s_mov_b32 s46, 0xffffff00
        """)
    def l2job():
        a(f"""
        s_lshr_b32 s93, s33, 2
        s_and_b32 s94, s33, 3
        s_mov_b32 s92, 0
        s_mov_b32 s97, 12
        s_cmp_lt_u32 s33, 12
        s_cbranch_scc1 L_j{uid[0]}a
        s_sub_u32 s94, s33, 12
        s_mul_i32 s93, s94, 43
        s_lshr_b32 s93, s93, 8
        s_mul_i32 s96, s93, 6
        s_sub_u32 s94, s94, s96
        s_mov_b32 s92, 1
        s_cmp_lt_u32 s33, 27
        s_cbranch_scc1 L_j{uid[0]}a
        s_sub_u32 s93, s33, 27
        s_mov_b32 s94, 4
        s_mov_b32 s92, 0
        s_mov_b32 s97, 16
        s_cmp_lt_u32 s33, 30
        s_cbranch_scc1 L_j{uid[0]}a
        s_mov_b32 s94, s93
        s_mov_b32 s93, 2
        s_mov_b32 s92, 1
        s_cmp_eq_u32 s33, 30
        s_cselect_b32 s97, 20, 16
        L_j{uid[0]}a:
        s_mul_i32 s96, s94, 12
        s_cmp_eq_u32 s33, 31
        s_cselect_b32 s96, 56, s96
        """)
        uid[0] += 1

    stamp(0)
    a(f"""
    s_load_dwordx16 s[4:19], s[0:1], 0
    s_load_dwordx8 s[20:27], s[0:1], 64
    s_load_dwordx4 s[28:31], s[0:1], 96
    v_readfirstlane_b32 s3, v0
    s_cmpk_ge_u32 s2, 256
    s_cbranch_scc1 L_exit
    s_and_b32 s32, s2, 7
    s_lshr_b32 s33, s2, 3
    s_lshr_b32 s35, s33, 4
    s_lshl1_add_u32 s34, s32, s35
    s_and_b32 s35, s33, 15
    s_add_u32 s33, s33, {jrot}
    s_and_b32 s33, s33, 31
    v_lshlrev_b32 v3, 5, v0
    v_and_b32 v0, 63, v0
    s_and_b32 s36, s35, 3
    s_lshr_b32 s37, s35, 2
    s_cmp_lg_u32 s3, 0
    s_cbranch_scc1 L_other0
    s_lshl2_add_u32 s38, s34, s37
    s_mul_i32 s39, s36, {144*64}
    s_add_u32 s39, s39, s38
    s_lshl_b32 s39, s39, 7
    v_lshrrev_b32 v4, 3, v0
    v_mul_u32_u24 v1, {18*8192}, v4
    v_and_b32 v5, 7, v0
    v_lshlrev_b32 v5, 4, v5
    v_add_u32 v1, v1, v5
    s_mov_b32 m0, {L_V}
    s_movk_i32 s40, 17
    s_movk_i32 s41, 0x2000
    s_getreg_b32 s47, hwreg(HW_REG_XCC_ID, 0, 4)
    v_or_b32_e64 v10, 64, s47
    v_mov_b32 v11, s2
    s_waitcnt lgkmcnt(0)
    global_store_byte v11, v10, s[28:29]
    s_add_u32 s10, s10, s39
    s_addc_u32 s11, s11, 0
    L_ldq:
    global_load_lds_dwordx4 v1, s[10:11]{nt}
    v_add_u32 v1, s41, v1
    s_addk_i32 m0, 0x400
    s_sub_u32 s40, s40, 1
    s_cbranch_scc0 L_ldq
    s_branch L_ld2
    L_other0:
    s_getpc_b64 s[58:59]
    global_load_dword v127, v3, s[58:59] offset:-2016
    s_branch L_other
    """)
    a.raw(f".fill (256 - (. - {KNAME})) / 4, 4, 0xbf800000")
    a("L_other:")
    zstamps()
    a(f"""
    v_mov_b32 v2, 0
    s_lshr_b32 s3, s3, 6
    s_cmp_lg_u32 s3, {NWAVES-1}
    s_cbranch_scc1 L_noz
    v_lshlrev_b32 v1, 3, v0
    v_mov_b32 v3, 0
    ds_write_b64 v1, v[2:3]
    s_waitcnt lgkmcnt(0)
    L_noz:
    s_barrier
    """)
    if pf:
        a(f"""
        s_cmp_lg_u32 s3, 4
        s_cbranch_scc1 L_nopf
        s_lshl_b32 s38, s34, 12
        s_lshl_b32 s39, s36, 10
        s_add_u32 s38, s38, s39
        s_lshl_b32 s39, s37, 8
        s_add_u32 s38, s38, s39
        s_lshl_b32 s40, s35, 7
        s_lshl_b32 s41, s34, 11
        s_add_u32 s41, s41, s40
        s_lshl_b32 s42, s34, 14
        s_add_u32 s42, s42, s40
        s_mul_i32 s43, s33, 57
        s_lshr_b32 s43, s43, 9
        s_mul_i32 s45, s43, 9
        s_sub_u32 s45, s33, s45
        s_mul_i32 s45, s45, 2304
        s_mul_i32 s43, s43, 768
        s_add_u32 s43, s43, s45
        s_mul_i32 s45, s32, 20736
        s_add_u32 s43, s43, s45
        s_waitcnt lgkmcnt(0)
        """)
        n = [84]
        def ld(pair, off):
            a(f"s_load_dword s{n[0]}, {pair}, {off}"); n[0] = 84 + (n[0] - 83) % 8
        if 'q' in pf:
            a("s_add_u32 s52, s30, s38\ns_addc_u32 s53, s31, 0")
            for i in range(2): ld("s[52:53]", WS_QP + 128 * i)
        if 'h' in pf:
            a("s_add_u32 s54, s30, s43\ns_addc_u32 s55, s31, 0")
            for i in range(6): ld("s[54:55]", WS_HP + 128 * i)
        if 'o' in pf:
            a("s_add_u32 s56, s30, s41\ns_addc_u32 s57, s31, 0")
            ld("s[56:57]", WS_ST)
            a("s_add_u32 s60, s30, s42\ns_addc_u32 s61, s31, 0")
            for i in range(8): ld("s[60:61]", WS_OP + 2048 * i)
        a("L_nopf:")
    a(f"""
    s_cmp_lt_u32 s33, 27
    s_cselect_b32 s48, 42, 18
    s_add_u32 s80, s48, 64
    s_add_u32 s81, s80, 64
    s_cmp_ge_u32 s3, 3
    s_cbranch_scc1 L_S
    s_cmp_eq_u32 s3, 1
    s_cbranch_scc1 L_Q
    s_branch L_L1
    """)
    def prog():
        a(f"""
        v_mov_b32 v6, s42
        ds_write_b32 v7, v6 offset:{L_PROG}
        """)
    def tile(name, base, W=W, tog=False):
        a(f"""
        {name}:
        s_waitcnt vmcnt({W-1})
        global_load_lds_dwordx4 v1, {base}{nt}
        """)
        prog()
        a(f"""
        s_addk_i32 m0, 896
        s_waitcnt vmcnt({W-1})
        global_load_lds_dwordx4 v1, {base} offset:128{nt}
        s_addk_i32 m0, 896
        s_addk_i32 s42, 2
        s_waitcnt vmcnt({W-1})
        global_load_lds_dwordx4 v1, {base} offset:256{nt}
        """)
        prog()
        a(f"""
        s_addk_i32 s42, 1
        s_addk_i32 m0, 1280
        v_add_u32 v1, s41, v1
        {"v_xor_b32 v1, 64, v1" if tog else ""}
        s_sub_u32 s40, s40, 1
        s_cbranch_scc0 {name}
        """)
    a("L_ld2:")
    zstamps()
    a(f"""
    s_setprio 3
    v_mov_b32 v2, 0
    v_lshlrev_b32 v7, 2, v0
    s_movk_i32 s42, {18 - (W - 1)}
    s_mul_i32 s38, s33, 57
    s_lshr_b32 s38, s38, 9
    s_mul_i32 s39, s38, 9
    s_sub_u32 s39, s33, s39
    s_mul_i32 s39, s39, {64*9216}
    s_mul_i32 s38, s38, 384
    s_add_u32 s39, s39, s38
    s_mul_i32 s38, s32, 1152
    s_add_u32 s39, s39, s38
    s_add_u32 s16, s16, s39
    s_addc_u32 s17, s17, 0
    v_mul_u32_u24 v1, 9216, v4
    v_add_u32 v1, v1, v5
    s_movk_i32 s40, 7
    s_mov_b32 m0, {L_W}
    s_mov_b32 s41, {8*9216}
    s_lshl_b32 s38, s34, 24
    s_lshl_b32 s39, s35, 16
    s_add_u32 s38, s38, s39
    s_add_u32 s38, s38, {61440*256}
    s_add_u32 s6, s6, s38
    s_addc_u32 s7, s7, 0
    s_add_u32 s8, s8, s38
    s_addc_u32 s9, s9, 0
    s_lshl_b32 s43, s35, 12
    v_and_b32 v8, 12, v0
    v_lshlrev_b32 v8, 6, v8
    v_and_b32 v9, 48, v0
    v_lshl_add_u32 v8, v9, 2, v8
    v_and_b32 v9, 3, v0
    v_lshl_add_u32 v8, v9, 4, v8
    v_lshlrev_b32 v9, 4, v0
    v_and_b32 v11, 48, v0
    v_lshlrev_b32 v11, 1, v11
    v_xor_b32 v9, v9, v11
    v_mul_u32_u24 v10, 1152, v4
    v_add_u32 v10, v10, v5
    {"v_and_b32 v11, 16, v0" if swz else ""}
    {"v_lshlrev_b32 v11, 1, v11" if swz else ""}
    {"v_xor_b32 v10, v10, v11" if swz else ""}
    s_barrier
    """)
    stamp(1)
    l2job()
    a(f"""
    s_cmp_lg_u32 s92, 0
    s_cselect_b32 s12, s20, s12
    s_cselect_b32 s13, s21, s13
    s_cselect_b32 s39, 72, 64
    s_mul_i32 s38, s32, s39
    s_add_u32 s38, s38, s96
    s_mul_i32 s38, s38, 9216
    s_mul_i32 s39, s93, 384
    s_add_u32 s38, s38, s39
    s_add_u32 s12, s12, s38
    s_addc_u32 s13, s13, 0
    s_cmp_ge_u32 s33, 27
    s_cbranch_scc1 L_ldw_done
    """)
    if W1: a(f"s_addk_i32 s42, {W - W1}")
    tile("L_ldw", "s[16:17]", W1 or W)
    if W1: a(f"s_addk_i32 s42, {W1 - W}")
    a(f"""
    L_ldw_done:
    s_mov_b32 m0, {L_K}
    s_movk_i32 s40, 15
    """)
    def quad(name, vlane, base, flag, W=W):
        a(f"""
        {name}:
        ds_read_b32 v3, v2 offset:{flag}
        s_and_b32 s43, s43, 0xffff
        v_add_u32 v1, s43, {vlane}
        """)
        for k in range(4):
            if k == 2 and vlane == "v9": a("v_xor_b32 v1, 0x80, v1")
            a(f"s_waitcnt vmcnt({W-1})")
            a(f"global_load_lds_dwordx4 v1, {base} offset:{1024*k}{nt}")
            if k == 0: a("s_addk_i32 s42, 1")
            if k == 1: prog()
            if k == 2: a("s_addk_i32 s42, 2")
        prog()
        a(f"""
        s_addk_i32 s42, 1
        s_addk_i32 m0, 0x1000
        s_addk_i32 s43, 0x1000
        s_sub_u32 s40, s40, 1
        s_cbranch_scc0 {name}
        """)
    def gate(name, flag, val):
        a(f"""
        s_waitcnt lgkmcnt(2)
        v_readfirstlane_b32 s44, v3
        s_cmp_ge_u32 s44, {val}
        s_cbranch_scc1 {name}_done
        """)
        spin(name, flag, "ge_u32", val, sreg="s44", sleep=0)
    def seg(name, vlane, base, flag, tr):
        if tr is None:
            quad(name, vlane, base, flag); return
        f0, n, wt = tr
        if f0:
            a(f"s_movk_i32 s40, {f0-1}")
            quad(name + "a", vlane, base, flag)
        a(f"s_movk_i32 s40, {n-1}")
        a(f"s_addk_i32 s42, {W - wt}")
        quad(name + "b", vlane, base, flag, wt)
        a(f"s_addk_i32 s42, {wt - W}")
        a(f"s_movk_i32 s40, {15 - f0 - n}")
        quad(name + "c", vlane, base, flag)
    seg("L_ldk", "v8", "s[6:7]", L_CS1, trk)
    gate("L_ldc1", L_CS1, 1)
    stamp(2)
    a("s_movk_i32 s40, 15")
    seg("L_ldv", "v9", "s[8:9]", L_CSC, trv)
    a(f"""
    s_sub_u32 s40, s97, 1
    s_movk_i32 s41, 9216
    v_mov_b32 v1, v10
    s_mov_b32 m0, {L_K}
    """)
    gate("L_ldc2", L_CSC, 4)
    stamp(3)
    def pause(tag, n, flag, Wp):
        a(f"s_movk_i32 s40, {n//3 - 1}")
        if Wp != W: a(f"s_addk_i32 s42, {W - Wp}")
        tile(f"L_ld3{tag}", "s[12:13]", Wp, tog=swz)
        cur = Wp - 1
        for r in range(n + 20, n - 1, -4):
            if r <= cur:
                a(f"s_waitcnt vmcnt({r})")
                a(f"s_addk_i32 s42, {cur - r}")
                cur = r
                prog()
        a(f"s_addk_i32 s42, {cur - (W2 - 1)}")
        a(f"s_sub_u32 s40, s97, {n//3 + 1}")
        if flag is not None:
            spin(f"L_ldp{tag}", flag, "ge_u32", 4 if flag == L_PUB else 1, sreg="s44", sleep=0)
    a("s_cmp_eq_u32 s92, 0")
    a("s_cbranch_scc1 L_ld3o0")
    pause("a", npre, L_PUB, W)
    a("s_branch L_ld3")
    a("L_ld3o0:")
    pause("o", npo, (L_PUB - 4) if early else None, Wo or W)
    if lean:
        a(f"""
        L_ld3:
        s_waitcnt vmcnt({W2-1})
        global_load_lds_dwordx4 v1, s[12:13]{nt}
        s_addk_i32 m0, 896
        {"v_mov_b32 v6, s42" if lean == 1 else "s_nop 0"}
        global_load_lds_dwordx4 v1, s[12:13] offset:128{nt}
        s_addk_i32 m0, 896
        s_addk_i32 s42, 3
        global_load_lds_dwordx4 v1, s[12:13] offset:256{nt}
        s_addk_i32 m0, 1280
        v_add_u32 v1, s41, v1
        {f"ds_write_b32 v7, v6 offset:{L_PROG}" if lean == 1 else ""}
        v_xor_b32 v1, 64, v1
        s_sub_u32 s40, s40, 1
        s_cbranch_scc0 L_ld3
        """)
    else:
        tile("L_ld3", "s[12:13]", W2, tog=swz)
    stamp(4)
    rem = W2 - 1
    stops = sorted({r for r in range(rem) if (r >= 16 and r % (4 if lean else 2) == 0) or r in (12, 0)}, reverse=True)
    for r in stops:
        a(f"s_waitcnt vmcnt({r})")
        a(f"s_addk_i32 s42, {rem - r}")
        rem = r
        prog()
    stamp(5)
    finish()

    a(f"""
    L_Q:
    s_mul_i32 s38, s36, 288
    v_lshrrev_b32 v3, 3, v0
    v_mul_u32_u24 v3, 36, v3
    v_add_u32 v3, s38, v3
    s_waitcnt lgkmcnt(0)
    global_load_dword v113, v2, s[30:31] sc1
    global_load_dwordx4 v[104:107], v3, s[4:5]
    global_load_dwordx4 v[108:111], v3, s[4:5] offset:16
    global_load_dword v112, v3, s[4:5] offset:32
    """)
    masks()
    a(f"""
    s_mov_b32 s42, 0x01000100
    s_mov_b32 s43, 0x03020302
    s_mov_b32 s46, 0xffffff00
    v_and_b32 v8, 7, v0
    v_lshlrev_b32 v8, 5, v8
    v_and_b32 v9, 16, v0
    v_add_u32 v8, v8, v9
    v_lshrrev_b32 v9, 5, v0
    v_lshl_add_u32 v8, v9, 3, v8
    s_lshl_b32 s44, s34, 12
    s_add_u32 s44, s44, {WS_QP}
    s_lshl_b32 s45, s36, 10
    s_lshl_b32 s47, s37, 8
    s_add_u32 s45, s45, s47
    s_add_u32 s45, s45, s44
    v_add_u32 v8, s45, v8
    v_lshlrev_b32 v11, 4, v0
    v_add_u32 v9, s44, v11
    v_add_u32 v11, {L_V}, v11
    s_waitcnt vmcnt(0)
    v_add_u32 v113, 1, v113
    v_and_b32 v12, 0xff, v113
    ds_write_b32 v2, v113 offset:{L_ENEW}
    """)
    for t in range(18):
        sel = "s42" if (t & 1) == 0 else "s43"
        x = 104 + (t >> 1)
        a(f"v_perm_b32 v10, v{x}, v{x}, {sel}")
        for d in range(4):
            a(f"v_and_b32 v{128+4*t+d}, v10, v{4+d}")
    spin("L_Qw", L_PROG, "ge_i32", 18, sleep=0)
    stamp(1)
    for t in range(12):
        a(f"ds_read_b128 v[{32+4*t}:{35+4*t}], v11 offset:{1024*t}")
    nread = 12
    for t in range(18):
        a(f"s_waitcnt lgkmcnt({nread-1-t})")
        src = "0" if t == 0 else "v[28:31]"
        a(f"{MFMA} v[28:31], v[{128+4*t}:{131+4*t}], v[{32+4*t}:{35+4*t}], {src}")
        if nread < 18:
            a(f"ds_read_b128 v[{32+4*nread}:{35+4*nread}], v11 offset:{1024*nread}")
            nread += 1
    lds_inc(L_CS1)
    spin("L_Ql", L_LOC, "lg_u32", 0, sleep=0)
    a("s_lshr_b32 s82, s40, 1")
    if forcelocal is not None: a(f"s_mov_b32 s82, {forcelocal}")
    a(f"""
    v_permlane32_swap_b32 v28, v30
    v_permlane32_swap_b32 v29, v31
    v_add_f32_dpp v28, v30, v28 row_ror:8 {DPPF}
    v_add_f32_dpp v29, v31, v29 row_ror:8 {DPPF}
    v_and_or_b32 v28, v28, s46, v12
    s_mov_b32 exec_lo, 0x00ff00ff
    s_mov_b32 exec_hi, 0x00ff00ff
    """)
    store2("global_store_dwordx2 v8, v[28:29], s[30:31]")
    a(f"""
    s_mov_b64 exec, -1
    s_lshl_b32 s45, s82, 9
    s_or_b32 s45, s45, 0x100
    v_or_b32 v10, s45, v12
    ds_write_b32 v2, v10 offset:{L_TAU}
    """)
    stamp(2)
    l2job()
    spin("L_Qg", L_PROG, "ge_i32", qgate)
    stamp(3)
    pollhead("L_Qpoll")
    for t in range(4):
        a(f"global_load_dwordx4 v[{32+4*t}:{35+4*t}], v9, s[30:31] offset:{1024*t} sc1")
    a("s_waitcnt vmcnt(0)")
    chk(list(range(32, 48, 2)))
    chkend("L_Qpoll")
    for d in range(0, 4, 2):
        a(f"v_pk_add_f32 v[{32+d}:{33+d}], v[{32+d}:{33+d}], v[{36+d}:{37+d}]")
        a(f"v_pk_add_f32 v[{40+d}:{41+d}], v[{40+d}:{41+d}], v[{44+d}:{45+d}]")
    for d in range(0, 4, 2):
        a(f"v_pk_add_f32 v[{32+d}:{33+d}], v[{32+d}:{33+d}], v[{40+d}:{41+d}]")
    a(f"""
    v_cvt_pk_bf16_f32 v32, v32, v33
    v_cvt_pk_bf16_f32 v33, v34, v35
    v_lshlrev_b32 v8, 3, v0
    v_mov_b32 v26, 1
    ds_write_b64 v8, v[32:33] offset:{L_Q}
    ds_write_b32 v2, v26 offset:{L_FQ}
    """)
    stamp(4)
    GC1 = -2.0 * math.log2(math.e) * math.sqrt(2.0 / math.pi)
    GC3 = GC1 * 0.044715
    a(f"""
    s_cmp_eq_u32 s92, 0
    s_cbranch_scc1 L_O
    s_lshl_b32 s38, s96, 1
    v_add_u32 v8, s38, v0
    s_mul_i32 s39, s32, 1152
    v_lshl_add_u32 v9, v8, 3, s39
    s_mul_i32 s39, s32, {9*2304}
    s_add_u32 s39, s39, {WS_HP + 2304}
    v_and_b32 v13, 0xf0, v8
    v_lshl_add_u32 v13, v13, 4, s39
    v_and_b32 v14, 1, v8
    v_lshl_add_u32 v13, v14, 7, v13
    v_and_b32 v14, 14, v8
    v_lshl_add_u32 v8, v14, 3, v13
    v_add_u32 v13, {3*2304}, v8
    v_add_u32 v14, {6*2304}, v8
    s_add_u32 s47, s80, {hgate}
    """)
    spin("L_Hg", L_PROG, "ge_i32", "s47")
    a(f"""
    s_lshl_b32 s98, s97, 1
    s_bfm_b64 exec, s98, 0
    global_load_dwordx2 v[16:17], v9, s[18:19]
    s_mov_b32 s42, {f2u(GC3)}
    v_mov_b32 v11, {f2u(GC1)}
    """)
    pollhead("L_Hpoll")
    for t in range(9):
        a(f"global_load_dwordx4 v[{32+4*t}:{35+4*t}], {('v8', 'v13', 'v14')[t // 3]}, s[30:31] offset:{2304*(t%3)-2304} sc1")
    a("s_waitcnt vmcnt(0)")
    chk(list(range(32, 68, 2)))
    chkend("L_Hpoll")
    stamp(5)
    for t in range(1, 9):
        for d in range(0, 4, 2):
            a(f"v_pk_add_f32 v[{32+d}:{33+d}], v[{32+d}:{33+d}], v[{32+4*t+d}:{33+4*t+d}]")
    a(f"""
    v_cvt_pk_bf16_f32 v36, v32, v33
    v_cvt_pk_bf16_f32 v37, v34, v35
    """)
    for i in range(4):
        src, bsrc = 36 + (i >> 1), 16 + (i >> 1)
        if i & 1:
            a(f"v_and_b32 v{32+i}, 0xffff0000, v{src}")
            a(f"v_and_b32 v{40+i}, 0xffff0000, v{bsrc}")
        else:
            a(f"v_lshlrev_b32 v{32+i}, 16, v{src}")
            a(f"v_lshlrev_b32 v{40+i}, 16, v{bsrc}")
    steps = [
        "v_add_f32 v{z}, v{z}, v{t}",
        "v_cvt_pk_bf16_f32 v{z}, v{z}, v{z}",
        "v_and_b32 v{z}, 0xffff0000, v{z}",
        "v_mul_f32 v{t}, v{z}, v{z}",
        "v_fma_f32 v{t}, v{t}, s42, v11",
        "v_mul_f32 v{t}, v{t}, v{z}",
        "v_exp_f32 v{t}, v{t}",
        "v_add_f32 v{t}, 1.0, v{t}",
        "v_rcp_f32 v{t}, v{t}",
        "v_mul_f32 v{z}, v{z}, v{t}",
    ]
    for st in steps:
        for i in range(4):
            a(st.format(z=32 + i, t=40 + i))
    a(f"""
    v_cvt_pk_bf16_f32 v32, v32, v33
    v_cvt_pk_bf16_f32 v33, v34, v35
    v_lshlrev_b32 v18, 3, v0
    ds_write_b64 v18, v[32:33] offset:{L_VEC}
    ds_write_b32 v2, v26 offset:{L_FV}
    """)
    stamp(6)
    finish()
    a(f"""
    L_O:
    s_lshr_b32 s38, s96, 2
    s_lshl_b32 s39, s32, 4
    s_add_u32 s39, s39, s38
    s_lshl_b32 s39, s39, 11
    s_add_u32 s39, s39, {WS_OP + 4096}
    v_lshlrev_b32 v9, 4, v0
    v_add_u32 v9, s39, v9
    s_lshl_b32 s39, s32, 12
    s_add_u32 s39, s39, {WS_ST}
    v_and_b32 v8, 15, v0
    v_lshlrev_b32 v8, 7, v8
    v_and_b32 v14, 32, v0
    v_lshl_add_u32 v8, v14, 6, v8
    v_and_b32 v14, 16, v0
    v_add3_u32 v8, v8, v14, s39
    v_lshrrev_b32 v14, 3, v0
    v_lshlrev_b32 v14, 2, v14
    v_and_b32 v18, 1, v0
    v_lshlrev_b32 v18, 5, v18
    v_and_b32 v19, 6, v0
    v_lshl_add_u32 v18, v19, 2, v18
    v_bfe_u32 v19, v0, 4, 1
    v_lshl_add_u32 v18, v19, 2, v18
    v_lshrrev_b32 v19, 5, v0
    v_lshl_add_u32 v18, v19, 1, v18
    s_mov_b32 s41, {f2u(CSC)}
    v_perm_b32 v15, v12, v12, 0
    s_add_u32 s47, s80, {sgate}
    """)
    for m in range(4):
        a(f"""
        s_add_u32 s45, s38, {m}
        s_and_b32 s45, s45, 12
        s_lshl_b32 s45, s45, 4
        v_add_u32 v{72+2*m}, s45, v14
        v_add_u32 v{73+2*m}, 32, v{72+2*m}
        """)
    for r in range(57, 64, 2):
        a(f"v_mov_b32 v{r}, 0")
    spin("L_Og1", L_PROG, "ge_i32", "s47")
    pollhead("L_Spoll")
    a("global_load_dwordx4 v[68:71], v8, s[30:31] sc1")
    a("s_waitcnt vmcnt(0)")
    a(f"""
    v_xor_b32 v10, v68, v15
    v_xor_b32 v11, v70, v15
    v_or_b32 v10, v10, v11
    v_cmp_ne_u32 vcc, 0, v10
    s_cbranch_vccnz L_Spoll
    v_max_f32_dpp v20, v69, v69 row_ror:1 {DPPF}
    v_max_f32_dpp v20, v20, v20 row_ror:2 {DPPF}
    v_max_f32_dpp v20, v20, v20 row_ror:4 {DPPF}
    v_max_f32_dpp v20, v20, v20 row_ror:8 {DPPF}
    v_sub_f32 v20, v69, v20
    v_mul_f32 v20, s41, v20
    v_exp_f32 v20, v20
    v_mul_f32 v21, v20, v71
    v_add_f32_dpp v21, v21, v21 row_ror:1 {DPPF}
    v_add_f32_dpp v21, v21, v21 row_ror:2 {DPPF}
    v_add_f32_dpp v21, v21, v21 row_ror:4 {DPPF}
    v_add_f32_dpp v21, v21, v21 row_ror:8 {DPPF}
    v_rcp_f32 v21, v21
    v_mul_f32 v20, v20, v21
    """)
    for i in range(8):
        a(f"ds_bpermute_b32 v{80+i}, v{72+i}, v20")
    a(f"s_add_u32 s47, s81, {ogate}")
    if early:
        spin("L_Og3", L_PUB, "ge_u32", 4, sleep=0)
        a("s_mov_b32 s51, 0x40000")
        a("s_branch L_Ogo")
        a("L_Opoll:")
        a("s_sub_u32 s51, s51, 1")
        a("s_cbranch_scc1 L_exit")
        spin("L_Og2", L_PROG, "ge_i32", "s47", sleep=0)
        a("L_Ogo:")
    else:
        spin("L_Og2", L_PROG, "ge_i32", "s47", sleep=0)
        pollhead("L_Opoll")
    for r in range(56, 64, 2):
        a(f"v_mov_b32 v{r}, v12")
    a("s_cmp_eq_u32 s97, 12")
    a("s_cbranch_scc1 L_O3")
    for t in range(6, 8):
        a(f"global_load_dwordx4 v[{32+4*t}:{35+4*t}], v9, s[30:31] offset:{1024*t-4096} sc1")
    a("L_O3:")
    for t in range(6):
        a(f"global_load_dwordx4 v[{32+4*t}:{35+4*t}], v9, s[30:31] offset:{1024*t-4096} sc1")
    if early: a(f"ds_write_b32 v2, v26 offset:{L_PUB-4}")
    for i, m in enumerate((3, 0, 1, 2)):
        a(f"s_waitcnt vmcnt({6 - 2*i})")
        chk([32 + 8 * m, 34 + 8 * m, 36 + 8 * m, 38 + 8 * m], first=(i == 0))
        for d in range(0, 4, 2):
            a(f"v_pk_mul_f32 v[{88+4*m+d}:{89+4*m+d}], v[{32+8*m+d}:{33+8*m+d}], v[{80+2*m}:{81+2*m}] op_sel_hi:[1,0]")
        if i == 3:
            a("v_and_b32 v10, 0xff, v10")
        for d in range(0, 4, 2):
            a(f"v_pk_fma_f32 v[{88+4*m+d}:{89+4*m+d}], v[{36+8*m+d}:{37+8*m+d}], v[{80+2*m}:{81+2*m}], v[{88+4*m+d}:{89+4*m+d}] op_sel:[0,1,0]")
        if i == 3:
            a("v_cmp_ne_u32 vcc, 0, v10")
            a("s_cbranch_vccnz L_Opoll")
            stamp(5)
        a(f"v_permlane32_swap_b32 v{88+4*m}, v{89+4*m}")
        a(f"v_permlane32_swap_b32 v{90+4*m}, v{91+4*m}")
        a(f"v_add_f32 v{88+4*m}, v{88+4*m}, v{89+4*m}")
        a(f"v_add_f32 v{90+4*m}, v{90+4*m}, v{91+4*m}")
    for m in (3, 0, 1, 2):
        a(f"v_permlane16_swap_b32 v{88+4*m}, v{90+4*m}")
    for m in (3, 0, 1, 2):
        a(f"v_add_f32 v{88+4*m}, v{88+4*m}, v{90+4*m}")
    for m in (3, 0, 1, 2):
        a(f"v_add_f32_dpp v{88+4*m}, v{88+4*m}, v{88+4*m} row_ror:8 {DPPF}")
    a(f"""
    v_cvt_pk_bf16_f32 v20, v88, v92
    v_cvt_pk_bf16_f32 v21, v96, v100
    ds_write_b16 v18, v20 offset:{L_VEC}
    ds_write_b16_d16_hi v18, v20 offset:{L_VEC+64}
    ds_write_b16 v18, v21 offset:{L_VEC+128}
    ds_write_b16_d16_hi v18, v21 offset:{L_VEC+192}
    ds_write_b32 v2, v26 offset:{L_FV}
    """)
    stamp(6)
    finish()

    a(f"""
    L_S:
    s_sub_u32 s44, s3, 3
    s_cmp_lg_u32 s44, 0
    s_cbranch_scc1 L_Snom
    s_getreg_b32 s47, hwreg(HW_REG_XCC_ID, 0, 4)
    v_or_b32_e64 v14, 64, s47
    v_and_b32 v15, 31, v0
    v_lshl_add_u32 v15, v15, 3, s32
    s_movk_i32 s49, {mkn}
    s_waitcnt lgkmcnt(0)
    L_Smk:
    global_load_ubyte v16, v15, s[28:29] sc1
    s_mov_b32 s45, 2
    s_waitcnt vmcnt(0)
    v_cmp_ne_u32 vcc, v14, v16
    s_cbranch_vccz L_Smk_done
    s_mov_b32 s45, 1
    s_sub_u32 s49, s49, 1
    s_cbranch_scc0 L_Smk
    L_Smk_done:
    v_mov_b32 v14, s45
    ds_write_b32 v2, v14 offset:{L_LOC}
    L_Snom:
    """)
    a(f"""
    v_and_b32 v8, 4, v0
    v_lshlrev_b32 v8, 6, v8
    v_and_b32 v9, 48, v0
    v_lshl_add_u32 v8, v9, 2, v8
    v_and_b32 v9, 3, v0
    v_lshl_add_u32 v28, v9, 4, v8
    v_and_b32 v8, 12, v0
    v_and_b32 v9, 16, v0
    v_lshl_add_u32 v8, v9, 6, v8
    v_lshrrev_b32 v9, 5, v0
    v_lshl_add_u32 v29, v9, 4, v8
    s_lshl_b32 s45, s44, 6
    s_add_u32 s45, s45, {L_S}
    v_add_u32 v27, s45, v29
    s_lshl_b32 s45, s44, 12
    s_add_u32 s45, s45, {L_K}
    v_lshlrev_b32 v31, 4, v0
    v_add_u32 v30, s45, v31
    v_and_b32 v9, 8, v0
    v_cmp_eq_u32 vcc, 0, v9
    s_lshl2_add_u32 s47, s44, s48
    s_add_u32 s47, s47, 4
    s_movk_i32 s49, 3
    """)
    l2job()
    spin("L_Sq", L_FQ, "lg_u32", 0)
    stamp(1)
    a(f"""
    ds_read_b128 v[12:15], v28 offset:{L_Q}
    ds_read_b32 v3, v2 offset:{L_TAU}
    s_waitcnt lgkmcnt(0)
    v_readfirstlane_b32 s63, v3
    """)
    for d in range(4):
        a(f"v_cndmask_b32 v{8+d}, 0, v{12+d}, vcc")
    for d in range(4):
        a(f"v_cndmask_b32_e64 v{12+d}, v{12+d}, 0, vcc")
    a("L_Sloop:")
    spin("L_Sk", L_PROG, "ge_i32", "s47")
    for c in range(4):
        a(f"ds_read_b128 v[{32+4*c}:{35+4*c}], v30 offset:{1024*c}")
    a(f"""
    v_add_u32 v30, 0x4000, v30
    s_add_u32 s47, s47, 16
    s_waitcnt lgkmcnt(3)
    {MFMA} v[16:19], v[8:11], v[32:35], 0
    s_waitcnt lgkmcnt(2)
    {MFMA} v[16:19], v[12:15], v[36:39], v[16:19]
    s_waitcnt lgkmcnt(1)
    {MFMA} v[20:23], v[8:11], v[40:43], 0
    s_waitcnt lgkmcnt(0)
    {MFMA} v[20:23], v[12:15], v[44:47], v[20:23]
    """)
    for m in range(2):
        a(f"v_mov_b32_dpp v{24+m}, v{16+4*m} quad_perm:[0,0,0,0] {DPPF}")
    for r in range(1, 4):
        for m in range(2):
            a(f"v_add_f32_dpp v{24+m}, v{16+4*m+r}, v{24+m} quad_perm:[{r},{r},{r},{r}] {DPPF}")
    a(f"""
    ds_write2_b32 v27, v24, v25 offset0:0 offset1:8
    v_add_u32 v27, 256, v27
    s_sub_u32 s49, s49, 1
    s_cbranch_scc0 L_Sloop
    """)
    lds_inc(L_CSC)
    stamp(2)
    tau_from("s63")
    a(f"""
    v_lshrrev_b32 v8, 4, v0
    v_lshlrev_b32 v30, 11, v8
    v_and_b32 v9, 12, v0
    v_lshl_add_u32 v30, v9, 6, v30
    v_and_b32 v10, 3, v0
    v_lshl_add_u32 v30, v10, 3, v30
    v_and_b32 v9, 28, v0
    v_lshlrev_b32 v9, 3, v9
    s_lshl_b32 s45, s44, 6
    v_xor_b32 v9, s45, v9
    v_add_u32 v30, {L_V}, v30
    v_xor_b32 v11, 32, v9
    v_add_u32 v28, v30, v11
    v_add_u32 v30, v30, v9
    v_and_b32 v9, 2, v0
    v_lshlrev_b32 v29, 8, v9
    v_lshl_add_u32 v29, v8, 4, v29
    v_lshlrev_b32 v10, 12, v9
    v_lshl_add_u32 v10, v8, 5, v10
    v_and_b32 v9, 1, v0
    v_lshl_add_u32 v10, v9, 4, v10
    v_cmp_eq_u32 s[86:87], 1, v9
    s_lshl_b32 s45, s34, 14
    s_lshl_b32 s47, s35, 7
    s_add_u32 s45, s45, s47
    s_lshl_b32 s47, s44, 11
    s_add_u32 s45, s45, s47
    s_add_u32 s45, s45, {WS_OP}
    v_add_u32 v10, s45, v10
    s_add_u32 s62, s80, 8
    """)
    for i in range(8):
        a(f"v_mov_b32 v{16+i}, 0")
    a(f"""
    s_movk_i32 s49, 7
    s_cmp_eq_u32 s44, 0
    s_cbranch_scc1 L_SM
    """)
    spin("L_Pp", L_FP, "lg_u32", 0)
    a(f"""
    s_branch L_Pgo
    L_SM:
    s_mov_b32 s41, {f2u(CSC)}
    s_lshl_b32 s45, s34, 11
    s_lshl_b32 s47, s35, 7
    s_add_u32 s45, s45, s47
    s_add_u32 s45, s45, {WS_ST}
    v_lshrrev_b32 v11, 1, v0
    v_add_u32 v11, s45, v11
    v_lshlrev_b32 v15, 5, v0
    """)
    spin("L_Pw", L_CSC, "ge_u32", 4, sleep=0)
    def half_reduce(op, v, t):
        for r in (1, 2, 4, 8):
            a(f"{op}_dpp {v}, {v}, {v} row_ror:{r} {DPPF}")
        a(f"""
        v_mov_b32 {t}, {v}
        v_permlane16_swap_b32 {t}, {v}
        {op} {v}, {v}, {t}
        """)
    a(f"""
    ds_read_b128 v[32:35], v15 offset:{L_S}
    ds_read_b128 v[36:39], v15 offset:{L_S+16}
    s_waitcnt lgkmcnt(0)
    v_max3_f32 v13, v32, v33, v34
    v_max3_f32 v14, v35, v36, v37
    v_max3_f32 v13, v13, v38, v39
    v_max_f32 v13, v13, v14
    """)
    half_reduce("v_max_f32", "v13", "v14")
    a("v_mul_f32 v14, s41, v13")
    for i in range(8):
        a(f"v_fma_f32 v{32+i}, v{32+i}, s41, -v14")
    for i in range(8):
        a(f"v_exp_f32 v{32+i}, v{32+i}")
    for i in range(4):
        a(f"v_cvt_pk_bf16_f32 v{40+i}, v{32+2*i}, v{33+2*i}")
    a(f"""
    ds_write_b128 v31, v[40:43] offset:{L_P}
    v_mov_b32 v15, 1
    ds_write_b32 v2, v15 offset:{L_FP}
    v_add_f32 v32, v32, v33
    v_add_f32 v34, v34, v35
    v_add_f32 v36, v36, v37
    v_add_f32 v38, v38, v39
    v_add_f32 v32, v32, v34
    v_add_f32 v36, v36, v38
    v_add_f32 v14, v32, v36
    """)
    half_reduce("v_add_f32", "v14", "v15")
    a(f"""
    v_perm_b32 v44, v12, v12, 0
    v_mov_b32 v45, v13
    v_mov_b32 v46, v44
    v_mov_b32 v47, v14
    s_mov_b32 exec_lo, 1
    s_mov_b32 exec_hi, 1
    """)
    store2("global_store_dwordx4 v11, v[44:47], s[30:31]")
    a("s_mov_b64 exec, -1")
    stamp(3)
    a(f"""
    L_Pgo:
    s_setprio 2
    s_mov_b32 s40, 0
    L_Ploop:
    ds_read_b128 v[24:27], v29 offset:{L_P}
    v_add_u32 v29, 64, v29
    s_cmp_ge_i32 s40, s62
    s_cbranch_scc1 L_Pv_done
    """)
    spin("L_Pv", L_PROG, "ge_i32", "s62", sleep=0)
    a(f"""
    ds_read_b64_tr_b16 v[32:33], v30
    ds_read_b64_tr_b16 v[34:35], v30 offset:1024
    ds_read_b64_tr_b16 v[36:37], v28
    ds_read_b64_tr_b16 v[38:39], v28 offset:1024
    v_add_u32 v30, 0x2000, v30
    v_add_u32 v28, 0x2000, v28
    s_add_u32 s62, s62, 8
    s_waitcnt lgkmcnt(2)
    {MFMA} v[16:19], v[32:35], v[24:27], v[16:19]
    s_waitcnt lgkmcnt(0)
    {MFMA} v[20:23], v[36:39], v[24:27], v[20:23]
    s_sub_u32 s49, s49, 1
    s_cbranch_scc0 L_Ploop
    """)
    stamp(4)
    a("""
    s_mov_b32 exec_lo, 0x000f000f
    s_mov_b32 exec_hi, 0x000f000f
    v_mov_b32 v3, 1
    """)
    for r in range(4):
        a(f"v_cndmask_b32 v{16+r}, v{16+r}, v{20+r}, s[86:87]")
    for r in (0, 2):
        a(f"v_and_or_b32 v{16+r}, v{16+r}, s46, v12")
    store2("global_store_dwordx4 v10, v[16:19], s[30:31]")
    a(f"""
    s_mov_b64 exec, 1
    ds_add_u32 v2, v3 offset:{L_PUB}
    s_mov_b64 exec, -1
    """)
    stamp(5)
    a("""
    s_cmp_eq_u32 s44, 0
    s_cbranch_scc1 L_fin
    """)

    a(f"""
    L_L2:
    s_sub_u32 s44, s44, 1
    s_lshr_b32 s95, s97, 2
    s_sub_u32 s95, s95, 1
    v_lshrrev_b32 v8, 4, v0
    v_mul_u32_u24 v1, 3072, v8
    v_and_b32 v9, 12, v0
    v_lshl_add_u32 v1, v9, 5, v1
    v_and_b32 v9, 3, v0
    v_lshl_add_u32 v1, v9, 3, v1
    s_lshl_b32 s45, s44, 10
    s_add_u32 s45, s45, {L_K}
    v_add_u32 v1, s45, v1
    s_mul_i32 s45, s95, 12288
    v_add_u32 v14, s45, v1
    """)
    if swz:
        a("v_and_b32 v9, 24, v0")
        a("v_lshlrev_b32 v9, 2, v9")
        for G_ in range(4):
            a(f"v_xor_b32 v10, {32*G_}, v9")
            a(f"v_add_u32 v{20+G_}, v10, v1")
            a(f"v_add_u32 v{24+G_}, v10, v14")
    a(f"""
    v_lshlrev_b32 v30, 4, v8
    s_lshl_b32 s45, s95, 6
    v_add_u32 v31, s45, v30
    s_mul_i32 s47, s93, 3
    s_add_u32 s47, s47, s44
    s_lshl_b32 s47, s47, {2 if pad else 1}
    {"v_bfe_u32 v8, v0, 2, 2" if pad else "v_bfe_u32 v8, v0, 3, 1"}
    v_add_u32 v8, s47, v8
    v_and_b32 v10, 7, v8
    v_cmp_eq_u32 s[84:85], s32, v10
    v_lshlrev_b32 v8, 14, v8
    v_and_b32 v9, {3 if pad else 7}, v0
    v_lshl_add_u32 v8, v9, 4, v8
    s_lshl3_add_u32 s38, s92, s94
    s_lshl3_add_u32 s38, s38, s32
    s_lshl_b32 s38, s38, 7
    s_add_u32 s38, s38, {WS_FP}
    v_add_u32 v13, s38, v8
    s_cmp_lg_u32 s82, 0
    s_cselect_b32 s84, s84, 0
    {'' if finlocal else 's_mov_b32 s84, 0'}
    s_and_b32 s84, s84, 0xffff
    s_xor_b32 s85, s84, 0xffff
    s_add_u32 s47, s81, 12
    """)
    BREG = lambda sl, G_: 40 + 16 * sl + 4 * G_
    AREG = lambda sl: 168 + 4 * sl
    DREG = lambda G_: 140 + 4 * G_
    def rd(sl):
        base, off = ("v14", 0) if sl == 0 else ("v1", 12288 * (sl - 1))
        for G_ in range(4):
            for hf in range(2):
                r = BREG(sl, G_) + 2 * hf
                if swz:
                    a(f"ds_read_b64_tr_b16 v[{r}:{r+1}], v{(24 if sl == 0 else 20)+G_} offset:{off + 512*hf}")
                else:
                    a(f"ds_read_b64_tr_b16 v[{r}:{r+1}], {base} offset:{off + 32*G_ + 512*hf}")
    def mm(sl, first=False):
        for G_ in range(4):
            c = "0" if first else f"v[{DREG(G_)}:{DREG(G_)+3}]"
            a(f"{MFMA} v[{DREG(G_)}:{DREG(G_)+3}], v[{AREG(sl)}:{AREG(sl)+3}], v[{BREG(sl,G_)}:{BREG(sl,G_)+3}], {c}")
    vecrd = "\n".join([f"ds_read_b128 v[{AREG(0)}:{AREG(0)+3}], v31 offset:{L_VEC}"] +
                      [f"ds_read_b128 v[{AREG(sl)}:{AREG(sl)+3}], v30 offset:{L_VEC+64*(sl-1)}" for sl in range(1, 3 if light else 5)])
    for sl in range(1, 5):
        if sl >= 3:
            a(f"s_cmp_lt_u32 s95, {sl}")
            a("s_cbranch_scc1 L_2r")
        spin(f"L_2a{sl}", L_PROG, "ge_i32", "s47")
        rd(sl)
        a("s_add_u32 s47, s47, 12")
    a("L_2r:")
    stamp(3)
    a(f"""
    s_mov_b32 s49, 0
    s_mov_b32 s50, 0x400000
    L_2b:
    ds_read_b32 v3, v2 offset:{L_FV}
    {vecrd}
    ds_read_b32 v29, v2 offset:{L_PROG}
    s_waitcnt lgkmcnt(0)
    v_readfirstlane_b32 s40, v3
    v_readfirstlane_b32 s41, v29
    s_cmp_lg_u32 s40, 0
    s_cbranch_scc1 L_2v_done
    s_cmp_ge_i32 s41, s47
    s_cbranch_scc1 L_2b_done
    s_sub_u32 s50, s50, 1
    s_cbranch_scc0 L_2b
    s_endpgm
    L_2b_done:
    s_mov_b32 s49, 1
    """)
    stamp(4)
    rd(0)
    spin("L_2v", L_FV, "lg_u32", 0, sleep=0, extra=vecrd)
    stamp(5)
    if light:
        for sl in (3, 4):
            a(f"ds_read_b128 v[{AREG(sl)}:{AREG(sl)+3}], v30 offset:{L_VEC+64*(sl-1)}")
    mm(1, first=True); mm(2)
    a("s_cmp_lt_u32 s95, 3")
    a("s_cbranch_scc1 L_2m")
    if light: a("s_waitcnt lgkmcnt(0)")
    mm(3)
    a("s_cmp_lt_u32 s95, 4")
    a("s_cbranch_scc1 L_2m")
    mm(4)
    a("""
    L_2m:
    s_cmp_lg_u32 s49, 0
    s_cbranch_scc1 L_2last
    """)
    spin("L_2c", L_PROG, "ge_i32", "s47", sleep=0)
    stamp(4)
    rd(0)
    a("L_2last:")
    for G_ in range(4):
        a(f"s_waitcnt lgkmcnt({6-2*G_})")
        a(f"{MFMA} v[{DREG(G_)}:{DREG(G_)+3}], v[{AREG(0)}:{AREG(0)+3}], v[{BREG(0,G_)}:{BREG(0,G_)+3}], v[{DREG(G_)}:{DREG(G_)+3}]")
    a(f"""
    s_mov_b32 exec_hi, 0
    v_and_or_b32 v16, v{DREG(0)}, s46, v12
    v_mov_b32 v17, v{DREG(1)}
    v_and_or_b32 v18, v{DREG(2)}, s46, v12
    v_mov_b32 v19, v{DREG(3)}
    s_mov_b32 exec_lo, s85
    global_store_dwordx4 v13, v[16:19], s[30:31] sc1
    s_mov_b32 exec_lo, s84
    s_cbranch_execz L_pub3
    global_store_dwordx4 v13, v[16:19], s[30:31]
    L_pub3:
    """)
    stamp(6)
    a("L_fin:")
    finish()

    a(f"""
    L_L1:
    s_cmp_ge_u32 s33, 27
    s_cbranch_scc1 L_R
    s_mul_i32 s38, s33, 57
    s_lshr_b32 s38, s38, 9
    s_mul_i32 s39, s38, 9
    s_sub_u32 s39, s33, s39
    v_lshrrev_b32 v8, 3, v0
    v_and_b32 v9, 3, v0
    v_lshl_add_u32 v8, v9, 3, v8
    v_lshlrev_b32 v8, 1, v8
    s_lshl_b32 s45, s39, 7
    v_add_u32 v8, s45, v8
    s_waitcnt lgkmcnt(0)
    global_load_ushort v28, v8, s[4:5]
    global_load_ushort v29, v8, s[4:5] offset:64
    """)
    masks()
    a(f"""
    s_mul_i32 s45, s32, 20736
    s_mul_i32 s47, s39, 2304
    s_add_u32 s45, s45, s47
    s_mul_i32 s47, s38, 768
    s_add_u32 s45, s45, s47
    s_add_u32 s45, s45, {WS_HP}
    v_bfe_u32 v8, v0, 4, 2
    v_and_b32 v10, 8, v0
    v_lshrrev_b32 v10, 1, v10
    v_add_u32 v8, v8, v10
    v_lshlrev_b32 v8, 7, v8
    v_and_b32 v9, 7, v0
    v_lshl_add_u32 v8, v9, 4, v8
    v_add_u32 v13, s45, v8
    v_lshlrev_b32 v1, 4, v0
    v_add_u32 v1, {L_W}, v1
    """)
    for i in range(12):
        a(f"v_mov_b32 v{16+i}, 0")
    a("""
    s_waitcnt vmcnt(0)
    v_lshl_or_b32 v28, v28, 16, v28
    v_lshl_or_b32 v29, v29, 16, v29
    s_movk_i32 s49, 1
    """)
    spin("L_1t", L_TAU, "lg_u32", 0)
    tau_from("s40")
    spin("L_1w", L_PROG, "ge_i32", 42)
    stamp(1)
    a("L_1loop:")
    for n in range(12):
        a(f"ds_read_b128 v[{32+4*n}:{35+4*n}], v1 offset:{1024*n}")
    for rg in range(4):
        for d in range(4):
            a(f"v_and_b32_dpp v{92+4*rg+d}, v28, v{4+d} quad_perm:[{rg},{rg},{rg},{rg}] {DPPF}")
        a(f"s_waitcnt lgkmcnt({9-3*rg})")
        for k in range(3):
            a(f"{MFMA} v[{16+4*k}:{19+4*k}], v[{92+4*rg}:{95+4*rg}], v[{32+12*rg+4*k}:{35+12*rg+4*k}], v[{16+4*k}:{19+4*k}]")
    a(f"""
    v_mov_b32 v28, v29
    v_add_u32 v1, {12*1024}, v1
    s_sub_u32 s49, s49, 1
    s_cbranch_scc0 L_1loop
    """)
    stamp(2)
    for r in range(4):
        a(f"v_permlane32_swap_b32 v{16+r}, v{20+r}")
    for r in range(4):
        a(f"v_mov_b32 v{8+r}, v{24+r}")
    for r in range(4):
        a(f"v_add_f32_dpp v{16+r}, v{20+r}, v{16+r} row_ror:8 {DPPF}")
    for r in range(4):
        a(f"v_permlane32_swap_b32 v{8+r}, v{24+r}")
    for r in range(4):
        a(f"v_add_f32_dpp v{16+r}, v{8+r}, v{24+r} row_ror:8 row_mask:0xf bank_mask:0xc")
    for r in (0, 2):
        a(f"v_and_or_b32 v{16+r}, v{16+r}, s46, v12")
    a("s_mov_b32 exec_hi, 0x00ff00ff")
    store2("global_store_dwordx4 v13, v[16:19], s[30:31]")
    a("s_mov_b32 exec_hi, -1")
    stamp(6)

    parts = 8 // G
    lg = {1: 0, 2: 1, 4: 2, 8: 3}
    a(f"""
    L_R:
    s_sub_u32 s38, 31, s33
    """)
    if pad:
        a("""
        s_lshl3_add_u32 s62, s38, s32
        s_and_b32 s39, s62, 1
        s_lshr_b32 s36, s62, 1
        """)
    else:
        a(f"""
        s_and_b32 s39, s38, {parts-1}
        s_lshr_b32 s36, s38, {lg[parts]}
        s_lshl3_add_u32 s36, s36, s32
        """)
    a(f"""
    s_cmp_ge_u32 s36, 18
    s_cbranch_scc1 L_fin
    s_lshr_b32 s37, s36, 1
    s_lshl_b32 s37, s37, 6
    s_and_b32 s38, s36, 1
    s_lshl3_add_u32 s37, s38, s37
    s_lshl_b32 s45, s39, {lg[G]}
    v_and_b32 v4, {G-1}, v0
    v_add_u32 v4, s45, v4
    v_and_b32 v9, 48, v0
    v_add3_u32 v8, v4, v9, s37
    v_lshlrev_b32 v8, 1, v8
    v_lshlrev_b32 v3, 2, v0
    v_mov_b32 v20, 0
    v_mov_b32 v25, 0
    s_waitcnt lgkmcnt(0)
    global_load_ushort v9, v8, s[22:23]
    """)
    for i in range(4):
        a(f"global_load_dword v{16+i}, v3, s[4:5] offset:{256*i}")
        a(f"global_load_dword v{21+i}, v3, s[24:25] offset:{256*i}")
    a(f"""
    s_mov_b32 exec_hi, 0
    global_load_dword v20, v3, s[4:5] offset:1024
    global_load_dword v25, v3, s[24:25] offset:1024
    s_mov_b32 exec_hi, -1
    s_lshl_b32 s38, {'s62' if pad else 's36'}, 14
    {'v_and_b32 v4, 3, v4' if pad else ''}
    s_add_u32 s38, s38, {WS_FP + 4096}
    v_lshrrev_b32 v1, {lg[G]}, v0
    v_lshlrev_b32 v1, 7, v1
    v_lshl_add_u32 v1, v4, 4, v1
    v_add_u32 v26, s38, v1
    v_add_u32 v27, 0x2000, v26
    v_mov_b32 v10, 0
    v_mov_b32 v11, 0x3f803f80
    s_waitcnt vmcnt(0)
    """)
    for i in range(5):
        a(f"""
        v_lshlrev_b32 v12, 16, v{16+i}
        v_and_b32 v13, 0xffff0000, v{16+i}
        v_lshlrev_b32 v14, 16, v{21+i}
        v_and_b32 v15, 0xffff0000, v{21+i}
        v_mul_f32 v12, v12, v14
        v_mul_f32 v13, v13, v15
        v_cvt_pk_bf16_f32 v12, v12, v13
        v_dot2c_f32_bf16 v10, v12, v11
        """)
    a(f"""
    v_add_f32_dpp v10, v10, v10 row_ror:1 {DPPF}
    v_add_f32_dpp v10, v10, v10 row_ror:2 {DPPF}
    v_add_f32_dpp v10, v10, v10 row_ror:4 {DPPF}
    v_add_f32_dpp v10, v10, v10 row_ror:8 {DPPF}
    v_mov_b32 v11, v10
    v_permlane16_swap_b32 v11, v10
    v_add_f32 v10, v10, v11
    v_mov_b32 v11, v10
    v_permlane32_swap_b32 v11, v10
    v_add_f32 v10, v10, v11
    v_cvt_pk_bf16_f32 v10, v10, v10
    v_and_b32 v10, 0xffff0000, v10
    v_mul_f32 v10, {f2u(-math.log2(math.e))}, v10
    v_exp_f32 v10, v10
    v_add_f32 v10, 1.0, v10
    v_rcp_f32 v10, v10
    v_cvt_pk_bf16_f32 v10, v10, v10
    v_and_b32 v5, 0xffff0000, v10
    v_sub_f32 v6, 1.0, v5
    v_cvt_pk_bf16_f32 v6, v6, v6
    v_and_b32 v6, 0xffff0000, v6
    v_lshlrev_b32 v7, 16, v9
    """)
    spin("L_Rt", L_TAU, "lg_u32", 0, vreg="v12", extra=f"ds_read_b32 v13, v2 offset:{L_ENEW}")
    PL = 64 // G
    NA = -(-40 // PL); NB = -(-48 // PL)
    def cnt(t, n): return max(0, min(PL, n - t * PL)) * G
    def m64(n): return (1 << n) - 1
    a("v_and_b32 v12, 0xff, v12")
    part = [32 + 4 * t for t in range(NA) if cnt(t, 40) < 64] + [64 + 4 * t for t in range(NB) if cnt(t, 40) < 64]
    for r in part:
        a(f"v_mov_b32 v{r+1}, 0"); a(f"v_mov_b32 v{r+3}, 0")
    tl = NB - 1
    assert all(cnt(t, 40) == 64 for t in range(tl))
    a(f"""
    s_cmp_ge_u32 s36, 12
    s_cselect_b32 s45, {cnt(tl, 40)}, {cnt(tl, 48) % 64}
    s_bfm_b64 s[52:53], s45, 0
    {"s_cselect_b64 s[52:53], s[52:53], -1" if cnt(tl, 48) == 64 else ""}
    s_or_b32 s36, s36, s39
    s_add_u32 s47, s81, {rgate}
    """)
    spin("L_Rg", L_PROG, "ge_i32", "s47")
    if sent is not None:
        a(f"""
        s_lshl_b32 s45, s32, 7
        s_add_u32 s45, s45, s38
        v_lshlrev_b32 v30, 10, v0
        v_add_u32 v30, s45, v30
        s_mov_b64 exec, 31
        """)
        pollhead("L_Rsent")
        a(f"""
        global_load_dword v31, v30, s[30:31] offset:-4096 sc1
        s_waitcnt vmcnt(0)
        v_xor_b32 v10, v31, v12
        v_and_b32 v10, 0xff, v10
        v_cmp_ne_u32 vcc, 0, v10
        s_bcnt1_i32_b64 s45, vcc
        s_cmp_gt_u32 s45, {sent}
        s_cbranch_scc1 L_Rsent
        s_mov_b64 exec, -1
        """)
    stamp(4)
    loads = []
    for t in range(NB):
        loads.append((64 + 4 * t, "v27", t, "s[52:53]" if t == tl else None))
    for t in range(NA):
        c = cnt(t, 40)
        loads.append((32 + 4 * t, "v26", t, None if c == 64 else c))
    assert rdepth == 1 or cnt(tl, 40) != 0
    if rmask:
        assert G == 4
        nl = len(loads)
        MK = lambda i: f"s[{84+2*i}:{85+2*i}]"
        for r in part:
            a(f"v_mov_b32 v{r}, 0"); a(f"v_mov_b32 v{r+2}, 0")
        for i, (r, base, t, ex) in enumerate(loads):
            if isinstance(ex, str): a(f"s_mov_b64 {MK(i)}, {ex}")
            elif ex is not None: a(f"s_bfm_b64 {MK(i)}, {ex}, 0")
            else: a(f"s_mov_b64 {MK(i)}, -1")
        a("v_mov_b32 v11, 0xff")
        a("s_mov_b32 s46, 0xffffff00")
        def rloads():
            for i, (r, base, t, ex) in enumerate(loads):
                a(f"s_mov_b64 exec, {MK(i)}")
                a(f"global_load_dwordx4 v[{r}:{r+3}], {base}, s[30:31] offset:{128*PL*t-4096} sc1")
        for d in range(rmask - 1):
            rloads()
            a(f"s_sleep {rstag}")
        pollhead("L_Rpoll")
        rloads()
        for i, (r, base, t, ex) in enumerate(loads):
            a(f"s_mov_b64 exec, {MK(i)}")
            a(f"s_waitcnt vmcnt({rmask * nl - 1 - i})")
            a(f"v_xor_b32 v10, v{r}, v12")
            a(f"v_bitop3_b32 v10, v{r+2}, v10, v12 bitop3:0xde")
            a(f"v_and_b32 v10, v11, v10")
            a(f"v_cmp_ne_u32 {MK(i)}, 0, v10")
        a("""
        s_mov_b64 exec, -1
        s_or_b64 s[54:55], s[84:85], s[86:87]
        s_or_b64 s[56:57], s[88:89], s[90:91]
        s_or_b64 s[54:55], s[54:55], s[92:93]
        s_or_b64 s[56:57], s[56:57], s[94:95]
        s_or_b64 s[54:55], s[54:55], s[56:57]
        s_cbranch_scc1 L_Rpoll
        """)
        for acc, r0 in ((96, 32), (100, 64)):
            for d in (0, 2):
                for t in range(3):
                    a(f"v_and_b32 v{108+t}, s46, v{r0+4*t+d}")
                a(f"v_add_f32 v{acc+d+1}, v{r0+d+1}, v{r0+4+d+1}")
                a(f"v_add_f32 v{acc+d}, v108, v109")
                a(f"v_add_f32 v{acc+d+1}, v{acc+d+1}, v{r0+8+d+1}")
                a(f"v_add_f32 v{acc+d}, v{acc+d}, v110")
    else:
        assert rdepth == 1 and G >= 2
        def rloads():
            for r in part:
                a(f"v_mov_b32 v{r}, v12"); a(f"v_mov_b32 v{r+2}, v12")
            for r, base, t, ex in loads:
                if isinstance(ex, str):
                    a(f"s_mov_b64 exec, {ex}")
                    if cnt(tl, 40) == 0: a("s_cbranch_execz L_Rskip")
                elif ex is not None:
                    a(f"s_bfm_b64 exec, {ex}, 0")
                a(f"global_load_dwordx4 v[{r}:{r+3}], {base}, s[30:31] offset:{128*PL*t-4096} sc1")
                if isinstance(ex, str) and cnt(tl, 40) == 0: a("L_Rskip:")
                if ex is not None: a("s_mov_b64 exec, -1")
        for d in range(rdepth - 1):
            rloads()
            a(f"s_sleep {rstag}")
        pollhead("L_Rpoll")
        rloads()
        cd = (0, 1, 2, 3)
        first = True
        nl = len(loads)
        for i, (r, base, t, ex) in enumerate(loads):
            wait = rdepth * nl - 1 - i
            if cnt(tl, 40) == 0 and i < tl: wait = max(0, wait - 1)
            a(f"s_waitcnt vmcnt({wait})")
            chk([r, r + 2], first=first); first = False
            acc = 100 if base == "v27" else 96
            n_ = NB if base == "v27" else NA
            if t == 0:
                if n_ == 1:
                    for d in range(4): a(f"v_mov_b32 v{acc+d}, v{r+d}")
                continue
            for d in range(0, 4, 2):
                f_ = (r - 4) if t == 1 else acc
                a(f"v_pk_add_f32 v[{acc+d}:{acc+d+1}], v[{f_+d}:{f_+d+1}], v[{r+d}:{r+d+1}]")
        chkend("L_Rpoll")
    stamp(3)
    for e in range(4):
        a(f"v_permlane32_swap_b32 v{96+e}, v{100+e}")
    for e in range(4):
        a(f"v_add_f32 v{104+e}, v{96+e}, v{100+e}")
    a(f"""
    v_permlane16_swap_b32 v104, v105
    v_permlane16_swap_b32 v106, v107
    v_add_f32 v104, v104, v105
    v_add_f32 v106, v106, v107
    """)
    for r in (8, 4, 2, 1):
        if r >= G:
            a(f"v_add_f32_dpp v104, v104, v104 row_ror:{r} {DPPF}")
            a(f"v_add_f32_dpp v106, v106, v106 row_ror:{r} {DPPF}")
    a(f"""
    v_permlane32_swap_b32 v104, v106
    v_cvt_pk_bf16_f32 v104, v104, v106
    v_and_b32 v106, 0xffff0000, v104
    v_lshlrev_b32 v104, 16, v104
    v_add_f32 v106, v106, v7
    v_mul_f32 v104, v104, v5
    v_cvt_pk_bf16_f32 v106, v106, v106
    v_and_b32 v106, 0xffff0000, v106
    v_mul_f32 v106, v106, v6
    v_cvt_pk_bf16_f32 v104, v104, v106
    v_and_b32 v106, 0xffff0000, v104
    v_lshlrev_b32 v104, 16, v104
    v_add_f32 v104, v104, v106
    v_cvt_pk_bf16_f32 v104, v104, v104
    s_mov_b32 exec_lo, {((1 << G) - 1) * 0x10001}
    s_mov_b32 exec_hi, {((1 << G) - 1) * 0x10001}
    global_store_short v8, v104, s[26:27]
    s_cmp_lg_u32 s36, 0
    s_cbranch_scc1 L_fin
    s_mov_b64 exec, 1
    global_store_dword v2, v13, s[30:31] sc1
    """)
    finish()
    if stamps:
        a(f"""
        L_stamp_out:
        s_memrealtime s[78:79]
        s_mov_b64 exec, 1
        s_waitcnt lgkmcnt(0)
        s_lshl_b32 s60, s2, 4
        s_add_u32 s60, s60, s3
        s_lshl_b32 s60, s60, 5
        s_add_u32 s60, s60, {WS_DBG}
        v_mov_b32 v1, s60
        """)
        for i in range(8):
            a(f"v_mov_b32 v{160+i}, s{64+2*i}")
        a("""
        global_store_dwordx4 v1, v[160:163], s[30:31]
        global_store_dwordx4 v1, v[164:167], s[30:31] offset:16
        """)
    a("L_exit:")
    a("s_endpgm")
    a.raw("L_codeend:")
    a.raw(f".fill ({CODE_PF} - (L_codeend - {KNAME})) / 4, 4, 0xbf800000")
    a.raw('.section .rodata,"a"')
    a.raw(".p2align 6")
    a.raw(f".amdhsa_kernel {KNAME}")
    a.raw("  .amdhsa_next_free_vgpr 200")
    a.raw("  .amdhsa_next_free_sgpr 100")
    a.raw("  .amdhsa_accum_offset 200")
    a.raw("  .amdhsa_group_segment_fixed_size 0")
    a.raw("  .amdhsa_kernarg_size 112")
    a.raw("  .amdhsa_user_sgpr_count 2")
    a.raw("  .amdhsa_user_sgpr_kernarg_segment_ptr 1")
    a.raw("  .amdhsa_system_sgpr_workgroup_id_x 1")
    a.raw(".end_amdhsa_kernel")
    t = a.text()
    for key, lab in (("q", "L_Qpoll"), ("h", "L_Hpoll"), ("s", "L_Spoll"), ("o", "L_Opoll")):
        i0 = t.index(lab + ":"); i1 = t.index("s_cbranch_vccnz " + lab, i0)
        body = t[i0:i1]
        if key in nop:
            body = re.sub(r"    global_load[^\n]*\n", "", body)
            t = t[:i0] + body + t[i1:].replace("s_cbranch_vccnz " + lab, "s_nop 0", 1)
        elif pol is not None:
            t = t[:i0] + body.replace(" sc1\n", pol + "\n") + t[i1:]
    return t

E = dict(G=4, npre=15, W2=30, ogate=24, early=True, W=21)
N = dict(E, sent=None, rgate=36)
N = dict(N, ogate=16)
F = dict(N, npo=18)
F = dict(F, W=22, W2=32)
V = {
    'k61': dict(F),
    'k61_a12': dict(F, npre=12, npo=15),
    'k61_a18': dict(F, npre=18, npo=18),
    'k61_g20': dict(F, ogate=20),
    'k61_g12': dict(F, ogate=12),
}
if __name__ == "__main__":
    for n, kw in V.items():
        open(f'gen/{n}.s', 'w').write(gen(**kw))
        open(f'gen/{n}_st.s', 'w').write(gen(stamps=True, **kw))
```

```python
import sys
sys.path.insert(0, 'gen')
import gen61 as g
kw = dict(g.F)
t = g.gen(**kw)
doc = """;
"""
key = '.amdgcn_target "amdgcn-amd-amdhsa--gfx950"\n'
open('final3.s', 'w').write(t.replace(key, doc + key, 1))
open('k64_st.s', 'w').write(g.gen(stamps=True, **kw))
open('k64_glob.s', 'w').write(g.gen(forcelocal=0, **kw))
```

```python
import sys, math, struct, re
from asmlib import Asm
KNAME = "gated_mix__sliding_block_cached__dense_activation_gelu__decode_kernel"

WS_QP = 0x1000
WS_ST = 0x18000
WS_OP = 0x20000
WS_HP = 0x60000
WS_FP = 0x90000
WS_DBG = 0x200000
L_TAU, L_FQ, L_CSC, L_CS1, L_FV, L_ENEW, L_FP, L_CPV, L_LOC, L_PUB = 0, 4, 8, 12, 16, 20, 24, 28, 32, 40
L_PROG = 256
L_Q = 512
L_S = 1024
L_P = 3072
L_VEC = 6144
L_K = 7168
L_V = L_K + 65536
L_W = L_V + 65536
LDS_BYTES = L_W + 24576
NWAVES = 7
def f2u(f): return struct.unpack('<I', struct.pack('<f', f))[0]
CSC = math.log2(math.e)
SCL = 128 ** -0.5
DPPF = "row_mask:0xf bank_mask:0xf"
CODE_PF = 12672
MFMA = "v_mfma_f32_16x16x32_bf16"

def gen(stamps=False, W=22, jrot=15, G=4, ogate=10, sgate=32, qgate=60, hgate=0, rgate=27, sent=2, forcelocal=None, mkn=2, rdepth=1, rstag=7, npre=None, W2=None, early=False, trk=None, trv=None, pf='', pol=None, nop='', finlocal=True, W1=None, swz=True, light=True, npo=15, Wo=None, rmask=0, pad=False, lean=0):
    W2 = W2 or W
    nt = " nt"
    a = Asm()
    hdr = open('gated_mix__sliding_block_cached__dense_activation_gelu__decode.s.ref').read().split('\n')
    for l in hdr:
        if l.startswith('; @launch'): break
        a.raw(l)
    a.raw(f"; @launch grid=(256,1,1) block=({NWAVES*64},1,1) lds={LDS_BYTES}")
    a.raw('.amdgcn_target "amdgcn-amd-amdhsa--gfx950"')
    a.raw(".text")
    a.raw(f".globl {KNAME}")
    a.raw(".p2align 8")
    a.raw(f".type {KNAME},@function")
    a.raw(f"{KNAME}:")
    def stamp(i):
        if stamps:
            a(f"s_memrealtime s[{64+2*i}:{65+2*i}]")
    def zstamps():
        if stamps:
            for i in range(1, 8):
                a(f"s_mov_b64 s[{64+2*i}:{65+2*i}], 0")
    def finish():
        a("s_branch L_stamp_out" if stamps else "s_endpgm")
    def spin(name, off, cmpop, val, sreg="s40", vreg="v3", sleep=1, extra=""):
        a(f"""
        s_mov_b32 s50, 0x400000
        {name}:
        ds_read_b32 {vreg}, v2 offset:{off}
        {extra}
        s_waitcnt lgkmcnt(0)
        v_readfirstlane_b32 {sreg}, {vreg}
        s_cmp_{cmpop} {sreg}, {val}
        s_cbranch_scc1 {name}_done
        {f"s_sleep {sleep}" if sleep else ""}
        s_sub_u32 s50, s50, 1
        s_cbranch_scc0 {name}
        s_endpgm
        {name}_done:
        """)
    def masks():
        a("""
        v_and_b32 v8, 1, v0
        v_lshlrev_b32 v8, 4, v8
        v_mov_b32 v9, 0xffff
        v_lshlrev_b32 v8, v8, v9
        v_bfe_u32 v9, v0, 1, 2
        v_cmp_eq_u32 vcc, 0, v9
        v_cmp_eq_u32 s[52:53], 1, v9
        v_cmp_eq_u32 s[54:55], 2, v9
        v_cmp_eq_u32 s[56:57], 3, v9
        v_cndmask_b32 v4, 0, v8, vcc
        v_cndmask_b32 v5, 0, v8, s[52:53]
        v_cndmask_b32 v6, 0, v8, s[54:55]
        v_cndmask_b32 v7, 0, v8, s[56:57]
        """)
    def lds_inc(off, vone="v3"):
        a(f"""
        v_mov_b32 {vone}, 1
        s_mov_b64 exec, 1
        ds_add_u32 v2, {vone} offset:{off}
        s_mov_b64 exec, -1
        """)
    def pollhead(name):
        a(f"""
        s_mov_b32 s50, 0x40000
        {name}:
        s_sub_u32 s50, s50, 1
        s_cbranch_scc1 L_exit
        """)
    def chk(regs, acc="v10", first=True):
        for i in range(0, len(regs), 2):
            a(f"v_xor_b32 v{regs[i]}, v{regs[i]}, v12")
            a(f"v_xor_b32 v{regs[i+1]}, v{regs[i+1]}, v12")
            if first: a(f"v_or_b32 {acc}, v{regs[i]}, v{regs[i+1]}"); first = False
            else: a(f"v_or3_b32 {acc}, {acc}, v{regs[i]}, v{regs[i+1]}")
    def chkend(label, acc="v10"):
        a(f"""
        v_and_b32 {acc}, 0xff, {acc}
        v_cmp_ne_u32 vcc, 0, {acc}
        s_cbranch_vccnz {label}
        """)
    uid = [0]
    def store2(ins):
        uid[0] += 1
        u = uid[0]
        a(f"""
        s_cmp_lg_u32 s82, 0
        s_cbranch_scc1 L_t{u}a
        {ins} sc1
        s_branch L_t{u}b
        L_t{u}a:
        {ins}
        L_t{u}b:
        """)
    def tau_from(sreg):
        a(f"""
        s_bfe_u32 s82, {sreg}, 0x10009
        s_and_b32 s45, {sreg}, 0xff
        v_mov_b32 v12, s45
        s_mov_b32 s46, 0xffffff00
        """)
    def l2job():
        a(f"""
        s_lshr_b32 s93, s33, 2
        s_and_b32 s94, s33, 3
        s_mov_b32 s92, 0
        s_mov_b32 s97, 12
        s_cmp_lt_u32 s33, 12
        s_cbranch_scc1 L_j{uid[0]}a
        s_sub_u32 s94, s33, 12
        s_mul_i32 s93, s94, 43
        s_lshr_b32 s93, s93, 8
        s_mul_i32 s96, s93, 6
        s_sub_u32 s94, s94, s96
        s_mov_b32 s92, 1
        s_cmp_lt_u32 s33, 27
        s_cbranch_scc1 L_j{uid[0]}a
        s_sub_u32 s93, s33, 27
        s_mov_b32 s94, 4
        s_mov_b32 s92, 0
        s_mov_b32 s97, 16
        s_cmp_lt_u32 s33, 30
        s_cbranch_scc1 L_j{uid[0]}a
        s_mov_b32 s94, s93
        s_mov_b32 s93, 2
        s_mov_b32 s92, 1
        s_cmp_eq_u32 s33, 30
        s_cselect_b32 s97, 20, 16
        L_j{uid[0]}a:
        s_mul_i32 s96, s94, 12
        s_cmp_eq_u32 s33, 31
        s_cselect_b32 s96, 56, s96
        """)
        uid[0] += 1

    stamp(0)
    a(f"""
    s_load_dwordx16 s[4:19], s[0:1], 0
    s_load_dwordx8 s[20:27], s[0:1], 64
    s_load_dwordx4 s[28:31], s[0:1], 96
    v_readfirstlane_b32 s3, v0
    s_cmpk_ge_u32 s2, 256
    s_cbranch_scc1 L_exit
    s_and_b32 s32, s2, 7
    s_lshr_b32 s33, s2, 3
    s_lshr_b32 s35, s33, 4
    s_lshl1_add_u32 s34, s32, s35
    s_and_b32 s35, s33, 15
    s_add_u32 s33, s33, {jrot}
    s_and_b32 s33, s33, 31
    v_lshlrev_b32 v3, 5, v0
    v_and_b32 v0, 63, v0
    s_and_b32 s36, s35, 3
    s_lshr_b32 s37, s35, 2
    s_cmp_lg_u32 s3, 0
    s_cbranch_scc1 L_other0
    s_lshl2_add_u32 s38, s34, s37
    s_mul_i32 s39, s36, {144*64}
    s_add_u32 s39, s39, s38
    s_lshl_b32 s39, s39, 7
    v_lshrrev_b32 v4, 3, v0
    v_mul_u32_u24 v1, {18*8192}, v4
    v_and_b32 v5, 7, v0
    v_lshlrev_b32 v5, 4, v5
    v_add_u32 v1, v1, v5
    s_mov_b32 m0, {L_V}
    s_movk_i32 s40, 17
    s_movk_i32 s41, 0x2000
    s_getreg_b32 s47, hwreg(HW_REG_XCC_ID, 0, 4)
    v_or_b32_e64 v10, 64, s47
    v_mov_b32 v11, s2
    s_waitcnt lgkmcnt(0)
    global_store_byte v11, v10, s[28:29]
    s_add_u32 s10, s10, s39
    s_addc_u32 s11, s11, 0
    L_ldq:
    global_load_lds_dwordx4 v1, s[10:11]{nt}
    v_add_u32 v1, s41, v1
    s_addk_i32 m0, 0x400
    s_sub_u32 s40, s40, 1
    s_cbranch_scc0 L_ldq
    s_branch L_ld2
    L_other0:
    s_getpc_b64 s[58:59]
    global_load_dword v127, v3, s[58:59] offset:-2016
    s_branch L_other
    """)
    a.raw(f".fill (256 - (. - {KNAME})) / 4, 4, 0xbf800000")
    a("L_other:")
    zstamps()
    a(f"""
    v_mov_b32 v2, 0
    s_lshr_b32 s3, s3, 6
    s_cmp_lg_u32 s3, {NWAVES-1}
    s_cbranch_scc1 L_noz
    v_lshlrev_b32 v1, 3, v0
    v_mov_b32 v3, 0
    ds_write_b64 v1, v[2:3]
    s_waitcnt lgkmcnt(0)
    L_noz:
    s_barrier
    """)
    if pf:
        a(f"""
        s_cmp_lg_u32 s3, 4
        s_cbranch_scc1 L_nopf
        s_lshl_b32 s38, s34, 12
        s_lshl_b32 s39, s36, 10
        s_add_u32 s38, s38, s39
        s_lshl_b32 s39, s37, 8
        s_add_u32 s38, s38, s39
        s_lshl_b32 s40, s35, 7
        s_lshl_b32 s41, s34, 11
        s_add_u32 s41, s41, s40
        s_lshl_b32 s42, s34, 14
        s_add_u32 s42, s42, s40
        s_mul_i32 s43, s33, 57
        s_lshr_b32 s43, s43, 9
        s_mul_i32 s45, s43, 9
        s_sub_u32 s45, s33, s45
        s_mul_i32 s45, s45, 2304
        s_mul_i32 s43, s43, 768
        s_add_u32 s43, s43, s45
        s_mul_i32 s45, s32, 20736
        s_add_u32 s43, s43, s45
        s_waitcnt lgkmcnt(0)
        """)
        n = [84]
        def ld(pair, off):
            a(f"s_load_dword s{n[0]}, {pair}, {off}"); n[0] = 84 + (n[0] - 83) % 8
        if 'q' in pf:
            a("s_add_u32 s52, s30, s38\ns_addc_u32 s53, s31, 0")
            for i in range(2): ld("s[52:53]", WS_QP + 128 * i)
        if 'h' in pf:
            a("s_add_u32 s54, s30, s43\ns_addc_u32 s55, s31, 0")
            for i in range(6): ld("s[54:55]", WS_HP + 128 * i)
        if 'o' in pf:
            a("s_add_u32 s56, s30, s41\ns_addc_u32 s57, s31, 0")
            ld("s[56:57]", WS_ST)
            a("s_add_u32 s60, s30, s42\ns_addc_u32 s61, s31, 0")
            for i in range(8): ld("s[60:61]", WS_OP + 2048 * i)
        a("L_nopf:")
    a(f"""
    s_cmp_lt_u32 s33, 27
    s_cselect_b32 s48, 42, 18
    s_add_u32 s80, s48, 64
    s_add_u32 s81, s80, 64
    s_cmp_ge_u32 s3, 3
    s_cbranch_scc1 L_S
    s_cmp_eq_u32 s3, 1
    s_cbranch_scc1 L_Q
    s_branch L_L1
    """)
    def prog():
        a(f"""
        v_mov_b32 v6, s42
        ds_write_b32 v7, v6 offset:{L_PROG}
        """)
    def tile(name, base, W=W, tog=False):
        a(f"""
        {name}:
        s_waitcnt vmcnt({W-1})
        global_load_lds_dwordx4 v1, {base}{nt}
        """)
        prog()
        a(f"""
        s_addk_i32 m0, 896
        s_waitcnt vmcnt({W-1})
        global_load_lds_dwordx4 v1, {base} offset:128{nt}
        s_addk_i32 m0, 896
        s_addk_i32 s42, 2
        s_waitcnt vmcnt({W-1})
        global_load_lds_dwordx4 v1, {base} offset:256{nt}
        """)
        prog()
        a(f"""
        s_addk_i32 s42, 1
        s_addk_i32 m0, 1280
        v_add_u32 v1, s41, v1
        {"v_xor_b32 v1, 64, v1" if tog else ""}
        s_sub_u32 s40, s40, 1
        s_cbranch_scc0 {name}
        """)
    a("L_ld2:")
    zstamps()
    a(f"""
    s_setprio 3
    v_mov_b32 v2, 0
    v_lshlrev_b32 v7, 2, v0
    s_movk_i32 s42, {18 - (W - 1)}
    s_mul_i32 s38, s33, 57
    s_lshr_b32 s38, s38, 9
    s_mul_i32 s39, s38, 9
    s_sub_u32 s39, s33, s39
    s_mul_i32 s39, s39, {64*9216}
    s_mul_i32 s38, s38, 384
    s_add_u32 s39, s39, s38
    s_mul_i32 s38, s32, 1152
    s_add_u32 s39, s39, s38
    s_add_u32 s16, s16, s39
    s_addc_u32 s17, s17, 0
    v_mul_u32_u24 v1, 9216, v4
    v_add_u32 v1, v1, v5
    s_movk_i32 s40, 7
    s_mov_b32 m0, {L_W}
    s_mov_b32 s41, {8*9216}
    s_lshl_b32 s38, s34, 24
    s_lshl_b32 s39, s35, 16
    s_add_u32 s38, s38, s39
    s_add_u32 s38, s38, {61440*256}
    s_add_u32 s6, s6, s38
    s_addc_u32 s7, s7, 0
    s_add_u32 s8, s8, s38
    s_addc_u32 s9, s9, 0
    s_lshl_b32 s43, s35, 12
    v_and_b32 v8, 12, v0
    v_lshlrev_b32 v8, 6, v8
    v_and_b32 v9, 48, v0
    v_lshl_add_u32 v8, v9, 2, v8
    v_and_b32 v9, 3, v0
    v_lshl_add_u32 v8, v9, 4, v8
    v_lshlrev_b32 v9, 4, v0
    v_and_b32 v11, 48, v0
    v_lshlrev_b32 v11, 1, v11
    v_xor_b32 v9, v9, v11
    v_mul_u32_u24 v10, 1152, v4
    v_add_u32 v10, v10, v5
    {"v_and_b32 v11, 16, v0" if swz else ""}
    {"v_lshlrev_b32 v11, 1, v11" if swz else ""}
    {"v_xor_b32 v10, v10, v11" if swz else ""}
    s_barrier
    """)
    stamp(1)
    l2job()
    a(f"""
    s_cmp_lg_u32 s92, 0
    s_cselect_b32 s12, s20, s12
    s_cselect_b32 s13, s21, s13
    s_cselect_b32 s39, 72, 64
    s_mul_i32 s38, s32, s39
    s_add_u32 s38, s38, s96
    s_mul_i32 s38, s38, 9216
    s_mul_i32 s39, s93, 384
    s_add_u32 s38, s38, s39
    s_add_u32 s12, s12, s38
    s_addc_u32 s13, s13, 0
    s_cmp_ge_u32 s33, 27
    s_cbranch_scc1 L_ldw_done
    """)
    if W1: a(f"s_addk_i32 s42, {W - W1}")
    tile("L_ldw", "s[16:17]", W1 or W)
    if W1: a(f"s_addk_i32 s42, {W1 - W}")
    a(f"""
    L_ldw_done:
    s_mov_b32 m0, {L_K}
    s_movk_i32 s40, 15
    """)
    def quad(name, vlane, base, flag, W=W):
        a(f"""
        {name}:
        ds_read_b32 v3, v2 offset:{flag}
        s_and_b32 s43, s43, 0xffff
        v_add_u32 v1, s43, {vlane}
        """)
        for k in range(4):
            if k == 2 and vlane == "v9": a("v_xor_b32 v1, 0x80, v1")
            a(f"s_waitcnt vmcnt({W-1})")
            a(f"global_load_lds_dwordx4 v1, {base} offset:{1024*k}{nt}")
            if k == 0: a("s_addk_i32 s42, 1")
            if k == 1: prog()
            if k == 2: a("s_addk_i32 s42, 2")
        prog()
        a(f"""
        s_addk_i32 s42, 1
        s_addk_i32 m0, 0x1000
        s_addk_i32 s43, 0x1000
        s_sub_u32 s40, s40, 1
        s_cbranch_scc0 {name}
        """)
    def gate(name, flag, val):
        a(f"""
        s_waitcnt lgkmcnt(2)
        v_readfirstlane_b32 s44, v3
        s_cmp_ge_u32 s44, {val}
        s_cbranch_scc1 {name}_done
        """)
        spin(name, flag, "ge_u32", val, sreg="s44", sleep=0)
    def seg(name, vlane, base, flag, tr):
        if tr is None:
            quad(name, vlane, base, flag); return
        f0, n, wt = tr
        if f0:
            a(f"s_movk_i32 s40, {f0-1}")
            quad(name + "a", vlane, base, flag)
        a(f"s_movk_i32 s40, {n-1}")
        a(f"s_addk_i32 s42, {W - wt}")
        quad(name + "b", vlane, base, flag, wt)
        a(f"s_addk_i32 s42, {wt - W}")
        a(f"s_movk_i32 s40, {15 - f0 - n}")
        quad(name + "c", vlane, base, flag)
    seg("L_ldk", "v8", "s[6:7]", L_CS1, trk)
    gate("L_ldc1", L_CS1, 1)
    stamp(2)
    a("s_movk_i32 s40, 15")
    seg("L_ldv", "v9", "s[8:9]", L_CSC, trv)
    a(f"""
    s_sub_u32 s40, s97, 1
    s_movk_i32 s41, 9216
    v_mov_b32 v1, v10
    s_mov_b32 m0, {L_K}
    """)
    gate("L_ldc2", L_CSC, 4)
    stamp(3)
    def pause(tag, n, flag, Wp):
        a(f"s_movk_i32 s40, {n//3 - 1}")
        if Wp != W: a(f"s_addk_i32 s42, {W - Wp}")
        tile(f"L_ld3{tag}", "s[12:13]", Wp, tog=swz)
        cur = Wp - 1
        for r in range(n + 20, n - 1, -4):
            if r <= cur:
                a(f"s_waitcnt vmcnt({r})")
                a(f"s_addk_i32 s42, {cur - r}")
                cur = r
                prog()
        a(f"s_addk_i32 s42, {cur - (W2 - 1)}")
        a(f"s_sub_u32 s40, s97, {n//3 + 1}")
        if flag is not None:
            spin(f"L_ldp{tag}", flag, "ge_u32", 4 if flag == L_PUB else 1, sreg="s44", sleep=0)
    a("s_cmp_eq_u32 s92, 0")
    a("s_cbranch_scc1 L_ld3o0")
    pause("a", npre, L_PUB, W)
    a("s_branch L_ld3")
    a("L_ld3o0:")
    pause("o", npo, (L_PUB - 4) if early else None, Wo or W)
    if lean:
        a(f"""
        L_ld3:
        s_waitcnt vmcnt({W2-1})
        global_load_lds_dwordx4 v1, s[12:13]{nt}
        s_addk_i32 m0, 896
        {"v_mov_b32 v6, s42" if lean == 1 else "s_nop 0"}
        global_load_lds_dwordx4 v1, s[12:13] offset:128{nt}
        s_addk_i32 m0, 896
        s_addk_i32 s42, 3
        global_load_lds_dwordx4 v1, s[12:13] offset:256{nt}
        s_addk_i32 m0, 1280
        v_add_u32 v1, s41, v1
        {f"ds_write_b32 v7, v6 offset:{L_PROG}" if lean == 1 else ""}
        v_xor_b32 v1, 64, v1
        s_sub_u32 s40, s40, 1
        s_cbranch_scc0 L_ld3
        """)
    else:
        tile("L_ld3", "s[12:13]", W2, tog=swz)
    stamp(4)
    rem = W2 - 1
    stops = sorted({r for r in range(rem) if (r >= 16 and r % (4 if lean else 2) == 0) or r in (12, 0)}, reverse=True)
    for r in stops:
        a(f"s_waitcnt vmcnt({r})")
        a(f"s_addk_i32 s42, {rem - r}")
        rem = r
        prog()
    stamp(5)
    finish()

    a(f"""
    L_Q:
    s_mul_i32 s38, s36, 288
    v_lshrrev_b32 v3, 3, v0
    v_mul_u32_u24 v3, 36, v3
    v_add_u32 v3, s38, v3
    s_waitcnt lgkmcnt(0)
    global_load_dword v113, v2, s[30:31] sc1
    global_load_dwordx4 v[104:107], v3, s[4:5]
    global_load_dwordx4 v[108:111], v3, s[4:5] offset:16
    global_load_dword v112, v3, s[4:5] offset:32
    """)
    masks()
    a(f"""
    s_mov_b32 s42, 0x01000100
    s_mov_b32 s43, 0x03020302
    s_mov_b32 s46, 0xffffff00
    v_and_b32 v8, 7, v0
    v_lshlrev_b32 v8, 5, v8
    v_and_b32 v9, 16, v0
    v_add_u32 v8, v8, v9
    v_lshrrev_b32 v9, 5, v0
    v_lshl_add_u32 v8, v9, 3, v8
    s_lshl_b32 s44, s34, 12
    s_add_u32 s44, s44, {WS_QP}
    s_lshl_b32 s45, s36, 10
    s_lshl_b32 s47, s37, 8
    s_add_u32 s45, s45, s47
    s_add_u32 s45, s45, s44
    v_add_u32 v8, s45, v8
    v_lshlrev_b32 v11, 4, v0
    v_add_u32 v9, s44, v11
    v_add_u32 v11, {L_V}, v11
    s_waitcnt vmcnt(0)
    v_add_u32 v113, 1, v113
    v_and_b32 v12, 0xff, v113
    ds_write_b32 v2, v113 offset:{L_ENEW}
    """)
    for t in range(18):
        sel = "s42" if (t & 1) == 0 else "s43"
        x = 104 + (t >> 1)
        a(f"v_perm_b32 v10, v{x}, v{x}, {sel}")
        for d in range(4):
            a(f"v_and_b32 v{128+4*t+d}, v10, v{4+d}")
    spin("L_Qw", L_PROG, "ge_i32", 18, sleep=0)
    stamp(1)
    for t in range(12):
        a(f"ds_read_b128 v[{32+4*t}:{35+4*t}], v11 offset:{1024*t}")
    nread = 12
    for t in range(18):
        a(f"s_waitcnt lgkmcnt({nread-1-t})")
        src = "0" if t == 0 else "v[28:31]"
        a(f"{MFMA} v[28:31], v[{128+4*t}:{131+4*t}], v[{32+4*t}:{35+4*t}], {src}")
        if nread < 18:
            a(f"ds_read_b128 v[{32+4*nread}:{35+4*nread}], v11 offset:{1024*nread}")
            nread += 1
    lds_inc(L_CS1)
    spin("L_Ql", L_LOC, "lg_u32", 0, sleep=0)
    a("s_lshr_b32 s82, s40, 1")
    if forcelocal is not None: a(f"s_mov_b32 s82, {forcelocal}")
    a(f"""
    v_permlane32_swap_b32 v28, v30
    v_permlane32_swap_b32 v29, v31
    v_add_f32_dpp v28, v30, v28 row_ror:8 {DPPF}
    v_add_f32_dpp v29, v31, v29 row_ror:8 {DPPF}
    v_and_or_b32 v28, v28, s46, v12
    s_mov_b32 exec_lo, 0x00ff00ff
    s_mov_b32 exec_hi, 0x00ff00ff
    """)
    store2("global_store_dwordx2 v8, v[28:29], s[30:31]")
    a(f"""
    s_mov_b64 exec, -1
    s_lshl_b32 s45, s82, 9
    s_or_b32 s45, s45, 0x100
    v_or_b32 v10, s45, v12
    ds_write_b32 v2, v10 offset:{L_TAU}
    """)
    stamp(2)
    l2job()
    spin("L_Qg", L_PROG, "ge_i32", qgate)
    stamp(3)
    pollhead("L_Qpoll")
    for t in range(4):
        a(f"global_load_dwordx4 v[{32+4*t}:{35+4*t}], v9, s[30:31] offset:{1024*t} sc1")
    a("s_waitcnt vmcnt(0)")
    chk(list(range(32, 48, 2)))
    chkend("L_Qpoll")
    for d in range(0, 4, 2):
        a(f"v_pk_add_f32 v[{32+d}:{33+d}], v[{32+d}:{33+d}], v[{36+d}:{37+d}]")
        a(f"v_pk_add_f32 v[{40+d}:{41+d}], v[{40+d}:{41+d}], v[{44+d}:{45+d}]")
    for d in range(0, 4, 2):
        a(f"v_pk_add_f32 v[{32+d}:{33+d}], v[{32+d}:{33+d}], v[{40+d}:{41+d}]")
    a(f"""
    v_cvt_pk_bf16_f32 v32, v32, v33
    v_cvt_pk_bf16_f32 v33, v34, v35
    v_lshlrev_b32 v8, 3, v0
    v_mov_b32 v26, 1
    ds_write_b64 v8, v[32:33] offset:{L_Q}
    ds_write_b32 v2, v26 offset:{L_FQ}
    """)
    stamp(4)
    GC1 = -2.0 * math.log2(math.e) * math.sqrt(2.0 / math.pi)
    GC3 = GC1 * 0.044715
    a(f"""
    s_cmp_eq_u32 s92, 0
    s_cbranch_scc1 L_O
    s_lshl_b32 s38, s96, 1
    v_add_u32 v8, s38, v0
    s_mul_i32 s39, s32, 1152
    v_lshl_add_u32 v9, v8, 3, s39
    s_mul_i32 s39, s32, {9*2304}
    s_add_u32 s39, s39, {WS_HP + 2304}
    v_and_b32 v13, 0xf0, v8
    v_lshl_add_u32 v13, v13, 4, s39
    v_and_b32 v14, 1, v8
    v_lshl_add_u32 v13, v14, 7, v13
    v_and_b32 v14, 14, v8
    v_lshl_add_u32 v8, v14, 3, v13
    v_add_u32 v13, {3*2304}, v8
    v_add_u32 v14, {6*2304}, v8
    s_add_u32 s47, s80, {hgate}
    """)
    spin("L_Hg", L_PROG, "ge_i32", "s47")
    a(f"""
    s_lshl_b32 s98, s97, 1
    s_bfm_b64 exec, s98, 0
    global_load_dwordx2 v[16:17], v9, s[18:19]
    s_mov_b32 s42, {f2u(GC3)}
    v_mov_b32 v11, {f2u(GC1)}
    """)
    pollhead("L_Hpoll")
    for t in range(9):
        a(f"global_load_dwordx4 v[{32+4*t}:{35+4*t}], {('v8', 'v13', 'v14')[t // 3]}, s[30:31] offset:{2304*(t%3)-2304} sc1")
    a("s_waitcnt vmcnt(0)")
    chk(list(range(32, 68, 2)))
    chkend("L_Hpoll")
    stamp(5)
    for t in range(1, 9):
        for d in range(0, 4, 2):
            a(f"v_pk_add_f32 v[{32+d}:{33+d}], v[{32+d}:{33+d}], v[{32+4*t+d}:{33+4*t+d}]")
    a(f"""
    v_cvt_pk_bf16_f32 v36, v32, v33
    v_cvt_pk_bf16_f32 v37, v34, v35
    """)
    for i in range(4):
        src, bsrc = 36 + (i >> 1), 16 + (i >> 1)
        if i & 1:
            a(f"v_and_b32 v{32+i}, 0xffff0000, v{src}")
            a(f"v_and_b32 v{40+i}, 0xffff0000, v{bsrc}")
        else:
            a(f"v_lshlrev_b32 v{32+i}, 16, v{src}")
            a(f"v_lshlrev_b32 v{40+i}, 16, v{bsrc}")
    steps = [
        "v_add_f32 v{z}, v{z}, v{t}",
        "v_cvt_pk_bf16_f32 v{z}, v{z}, v{z}",
        "v_and_b32 v{z}, 0xffff0000, v{z}",
        "v_mul_f32 v{t}, v{z}, v{z}",
        "v_fma_f32 v{t}, v{t}, s42, v11",
        "v_mul_f32 v{t}, v{t}, v{z}",
        "v_exp_f32 v{t}, v{t}",
        "v_add_f32 v{t}, 1.0, v{t}",
        "v_rcp_f32 v{t}, v{t}",
        "v_mul_f32 v{z}, v{z}, v{t}",
    ]
    for st in steps:
        for i in range(4):
            a(st.format(z=32 + i, t=40 + i))
    a(f"""
    v_cvt_pk_bf16_f32 v32, v32, v33
    v_cvt_pk_bf16_f32 v33, v34, v35
    v_lshlrev_b32 v18, 3, v0
    ds_write_b64 v18, v[32:33] offset:{L_VEC}
    ds_write_b32 v2, v26 offset:{L_FV}
    """)
    stamp(6)
    finish()
    a(f"""
    L_O:
    s_lshr_b32 s38, s96, 2
    s_lshl_b32 s39, s32, 4
    s_add_u32 s39, s39, s38
    s_lshl_b32 s39, s39, 11
    s_add_u32 s39, s39, {WS_OP + 4096}
    v_lshlrev_b32 v9, 4, v0
    v_add_u32 v9, s39, v9
    s_lshl_b32 s39, s32, 12
    s_add_u32 s39, s39, {WS_ST}
    v_and_b32 v8, 15, v0
    v_lshlrev_b32 v8, 7, v8
    v_and_b32 v14, 32, v0
    v_lshl_add_u32 v8, v14, 6, v8
    v_and_b32 v14, 16, v0
    v_add3_u32 v8, v8, v14, s39
    v_lshrrev_b32 v14, 3, v0
    v_lshlrev_b32 v14, 2, v14
    v_and_b32 v18, 1, v0
    v_lshlrev_b32 v18, 5, v18
    v_and_b32 v19, 6, v0
    v_lshl_add_u32 v18, v19, 2, v18
    v_bfe_u32 v19, v0, 4, 1
    v_lshl_add_u32 v18, v19, 2, v18
    v_lshrrev_b32 v19, 5, v0
    v_lshl_add_u32 v18, v19, 1, v18
    s_mov_b32 s41, {f2u(CSC)}
    v_perm_b32 v15, v12, v12, 0
    s_add_u32 s47, s80, {sgate}
    """)
    for m in range(4):
        a(f"""
        s_add_u32 s45, s38, {m}
        s_and_b32 s45, s45, 12
        s_lshl_b32 s45, s45, 4
        v_add_u32 v{72+2*m}, s45, v14
        v_add_u32 v{73+2*m}, 32, v{72+2*m}
        """)
    for r in range(57, 64, 2):
        a(f"v_mov_b32 v{r}, 0")
    spin("L_Og1", L_PROG, "ge_i32", "s47")
    pollhead("L_Spoll")
    a("global_load_dwordx4 v[68:71], v8, s[30:31] sc1")
    a("s_waitcnt vmcnt(0)")
    a(f"""
    v_xor_b32 v10, v68, v15
    v_xor_b32 v11, v70, v15
    v_or_b32 v10, v10, v11
    v_cmp_ne_u32 vcc, 0, v10
    s_cbranch_vccnz L_Spoll
    v_max_f32_dpp v20, v69, v69 row_ror:1 {DPPF}
    v_max_f32_dpp v20, v20, v20 row_ror:2 {DPPF}
    v_max_f32_dpp v20, v20, v20 row_ror:4 {DPPF}
    v_max_f32_dpp v20, v20, v20 row_ror:8 {DPPF}
    v_sub_f32 v20, v69, v20
    v_mul_f32 v20, s41, v20
    v_exp_f32 v20, v20
    v_mul_f32 v21, v20, v71
    v_add_f32_dpp v21, v21, v21 row_ror:1 {DPPF}
    v_add_f32_dpp v21, v21, v21 row_ror:2 {DPPF}
    v_add_f32_dpp v21, v21, v21 row_ror:4 {DPPF}
    v_add_f32_dpp v21, v21, v21 row_ror:8 {DPPF}
    v_rcp_f32 v21, v21
    v_mul_f32 v20, v20, v21
    """)
    for i in range(8):
        a(f"ds_bpermute_b32 v{80+i}, v{72+i}, v20")
    a(f"s_add_u32 s47, s81, {ogate}")
    if early:
        spin("L_Og3", L_PUB, "ge_u32", 4, sleep=0)
        a("s_mov_b32 s51, 0x40000")
        a("s_branch L_Ogo")
        a("L_Opoll:")
        a("s_sub_u32 s51, s51, 1")
        a("s_cbranch_scc1 L_exit")
        spin("L_Og2", L_PROG, "ge_i32", "s47", sleep=0)
        a("L_Ogo:")
    else:
        spin("L_Og2", L_PROG, "ge_i32", "s47", sleep=0)
        pollhead("L_Opoll")
    for r in range(56, 64, 2):
        a(f"v_mov_b32 v{r}, v12")
    a("s_cmp_eq_u32 s97, 12")
    a("s_cbranch_scc1 L_O3")
    for t in range(6, 8):
        a(f"global_load_dwordx4 v[{32+4*t}:{35+4*t}], v9, s[30:31] offset:{1024*t-4096} sc1")
    a("L_O3:")
    for t in range(6):
        a(f"global_load_dwordx4 v[{32+4*t}:{35+4*t}], v9, s[30:31] offset:{1024*t-4096} sc1")
    if early: a(f"ds_write_b32 v2, v26 offset:{L_PUB-4}")
    for i, m in enumerate((3, 0, 1, 2)):
        a(f"s_waitcnt vmcnt({6 - 2*i})")
        chk([32 + 8 * m, 34 + 8 * m, 36 + 8 * m, 38 + 8 * m], first=(i == 0))
        for d in range(0, 4, 2):
            a(f"v_pk_mul_f32 v[{88+4*m+d}:{89+4*m+d}], v[{32+8*m+d}:{33+8*m+d}], v[{80+2*m}:{81+2*m}] op_sel_hi:[1,0]")
        if i == 3:
            a("v_and_b32 v10, 0xff, v10")
        for d in range(0, 4, 2):
            a(f"v_pk_fma_f32 v[{88+4*m+d}:{89+4*m+d}], v[{36+8*m+d}:{37+8*m+d}], v[{80+2*m}:{81+2*m}], v[{88+4*m+d}:{89+4*m+d}] op_sel:[0,1,0]")
        if i == 3:
            a("v_cmp_ne_u32 vcc, 0, v10")
            a("s_cbranch_vccnz L_Opoll")
            stamp(5)
        a(f"v_permlane32_swap_b32 v{88+4*m}, v{89+4*m}")
        a(f"v_permlane32_swap_b32 v{90+4*m}, v{91+4*m}")
        a(f"v_add_f32 v{88+4*m}, v{88+4*m}, v{89+4*m}")
        a(f"v_add_f32 v{90+4*m}, v{90+4*m}, v{91+4*m}")
    for m in (3, 0, 1, 2):
        a(f"v_permlane16_swap_b32 v{88+4*m}, v{90+4*m}")
    for m in (3, 0, 1, 2):
        a(f"v_add_f32 v{88+4*m}, v{88+4*m}, v{90+4*m}")
    for m in (3, 0, 1, 2):
        a(f"v_add_f32_dpp v{88+4*m}, v{88+4*m}, v{88+4*m} row_ror:8 {DPPF}")
    a(f"""
    v_cvt_pk_bf16_f32 v20, v88, v92
    v_cvt_pk_bf16_f32 v21, v96, v100
    ds_write_b16 v18, v20 offset:{L_VEC}
    ds_write_b16_d16_hi v18, v20 offset:{L_VEC+64}
    ds_write_b16 v18, v21 offset:{L_VEC+128}
    ds_write_b16_d16_hi v18, v21 offset:{L_VEC+192}
    ds_write_b32 v2, v26 offset:{L_FV}
    """)
    stamp(6)
    finish()

    a(f"""
    L_S:
    s_sub_u32 s44, s3, 3
    s_cmp_lg_u32 s44, 0
    s_cbranch_scc1 L_Snom
    s_getreg_b32 s47, hwreg(HW_REG_XCC_ID, 0, 4)
    v_or_b32_e64 v14, 64, s47
    v_and_b32 v15, 31, v0
    v_lshl_add_u32 v15, v15, 3, s32
    s_movk_i32 s49, {mkn}
    s_waitcnt lgkmcnt(0)
    L_Smk:
    global_load_ubyte v16, v15, s[28:29] sc1
    s_mov_b32 s45, 2
    s_waitcnt vmcnt(0)
    v_cmp_ne_u32 vcc, v14, v16
    s_cbranch_vccz L_Smk_done
    s_mov_b32 s45, 1
    s_sub_u32 s49, s49, 1
    s_cbranch_scc0 L_Smk
    L_Smk_done:
    v_mov_b32 v14, s45
    ds_write_b32 v2, v14 offset:{L_LOC}
    L_Snom:
    """)
    a(f"""
    v_and_b32 v8, 4, v0
    v_lshlrev_b32 v8, 6, v8
    v_and_b32 v9, 48, v0
    v_lshl_add_u32 v8, v9, 2, v8
    v_and_b32 v9, 3, v0
    v_lshl_add_u32 v28, v9, 4, v8
    v_and_b32 v8, 12, v0
    v_and_b32 v9, 16, v0
    v_lshl_add_u32 v8, v9, 6, v8
    v_lshrrev_b32 v9, 5, v0
    v_lshl_add_u32 v29, v9, 4, v8
    s_lshl_b32 s45, s44, 6
    s_add_u32 s45, s45, {L_S}
    v_add_u32 v27, s45, v29
    s_lshl_b32 s45, s44, 12
    s_add_u32 s45, s45, {L_K}
    v_lshlrev_b32 v31, 4, v0
    v_add_u32 v30, s45, v31
    v_and_b32 v9, 8, v0
    v_cmp_eq_u32 vcc, 0, v9
    s_lshl2_add_u32 s47, s44, s48
    s_add_u32 s47, s47, 4
    s_movk_i32 s49, 3
    """)
    l2job()
    spin("L_Sq", L_FQ, "lg_u32", 0)
    stamp(1)
    a(f"""
    ds_read_b128 v[12:15], v28 offset:{L_Q}
    ds_read_b32 v3, v2 offset:{L_TAU}
    s_waitcnt lgkmcnt(0)
    v_readfirstlane_b32 s63, v3
    """)
    for d in range(4):
        a(f"v_cndmask_b32 v{8+d}, 0, v{12+d}, vcc")
    for d in range(4):
        a(f"v_cndmask_b32_e64 v{12+d}, v{12+d}, 0, vcc")
    a(f"s_mov_b32 s42, {f2u(SCL)}")
    a("L_Sloop:")
    spin("L_Sk", L_PROG, "ge_i32", "s47")
    for c in range(4):
        a(f"ds_read_b128 v[{32+4*c}:{35+4*c}], v30 offset:{1024*c}")
    a(f"""
    v_add_u32 v30, 0x4000, v30
    s_add_u32 s47, s47, 16
    s_waitcnt lgkmcnt(3)
    {MFMA} v[16:19], v[8:11], v[32:35], 0
    s_waitcnt lgkmcnt(2)
    {MFMA} v[16:19], v[12:15], v[36:39], v[16:19]
    s_waitcnt lgkmcnt(1)
    {MFMA} v[20:23], v[8:11], v[40:43], 0
    s_waitcnt lgkmcnt(0)
    {MFMA} v[20:23], v[12:15], v[44:47], v[20:23]
    """)
    for m in range(2):
        a(f"v_mov_b32_dpp v{24+m}, v{16+4*m} quad_perm:[0,0,0,0] {DPPF}")
    for r in range(1, 4):
        for m in range(2):
            a(f"v_add_f32_dpp v{24+m}, v{16+4*m+r}, v{24+m} quad_perm:[{r},{r},{r},{r}] {DPPF}")
    a(f"""
    v_cvt_pk_bf16_f32 v25, v24, v25
    v_lshlrev_b32 v24, 16, v25
    v_and_b32 v25, 0xffff0000, v25
    v_mul_f32 v24, s42, v24
    v_mul_f32 v25, s42, v25
    v_cvt_pk_bf16_f32 v25, v24, v25
    v_lshlrev_b32 v24, 16, v25
    v_and_b32 v25, 0xffff0000, v25
    ds_write2_b32 v27, v24, v25 offset0:0 offset1:8
    v_add_u32 v27, 256, v27
    s_sub_u32 s49, s49, 1
    s_cbranch_scc0 L_Sloop
    """)
    lds_inc(L_CSC)
    stamp(2)
    tau_from("s63")
    a(f"""
    v_lshrrev_b32 v8, 4, v0
    v_lshlrev_b32 v30, 11, v8
    v_and_b32 v9, 12, v0
    v_lshl_add_u32 v30, v9, 6, v30
    v_and_b32 v10, 3, v0
    v_lshl_add_u32 v30, v10, 3, v30
    v_and_b32 v9, 28, v0
    v_lshlrev_b32 v9, 3, v9
    s_lshl_b32 s45, s44, 6
    v_xor_b32 v9, s45, v9
    v_add_u32 v30, {L_V}, v30
    v_xor_b32 v11, 32, v9
    v_add_u32 v28, v30, v11
    v_add_u32 v30, v30, v9
    v_and_b32 v9, 2, v0
    v_lshlrev_b32 v29, 8, v9
    v_lshl_add_u32 v29, v8, 4, v29
    v_lshlrev_b32 v10, 12, v9
    v_lshl_add_u32 v10, v8, 5, v10
    v_and_b32 v9, 1, v0
    v_lshl_add_u32 v10, v9, 4, v10
    v_cmp_eq_u32 s[86:87], 1, v9
    s_lshl_b32 s45, s34, 14
    s_lshl_b32 s47, s35, 7
    s_add_u32 s45, s45, s47
    s_lshl_b32 s47, s44, 11
    s_add_u32 s45, s45, s47
    s_add_u32 s45, s45, {WS_OP}
    v_add_u32 v10, s45, v10
    s_add_u32 s62, s80, 8
    """)
    for i in range(8):
        a(f"v_mov_b32 v{16+i}, 0")
    a(f"""
    s_movk_i32 s49, 7
    s_cmp_eq_u32 s44, 0
    s_cbranch_scc1 L_SM
    """)
    spin("L_Pp", L_FP, "lg_u32", 0)
    a(f"""
    s_branch L_Pgo
    L_SM:
    s_mov_b32 s41, {f2u(CSC)}
    s_lshl_b32 s45, s34, 11
    s_lshl_b32 s47, s35, 7
    s_add_u32 s45, s45, s47
    s_add_u32 s45, s45, {WS_ST}
    v_lshrrev_b32 v11, 1, v0
    v_add_u32 v11, s45, v11
    v_lshlrev_b32 v15, 5, v0
    """)
    spin("L_Pw", L_CSC, "ge_u32", 4, sleep=0)
    def half_reduce(op, v, t):
        for r in (1, 2, 4, 8):
            a(f"{op}_dpp {v}, {v}, {v} row_ror:{r} {DPPF}")
        a(f"""
        v_mov_b32 {t}, {v}
        v_permlane16_swap_b32 {t}, {v}
        {op} {v}, {v}, {t}
        """)
    a(f"""
    ds_read_b128 v[32:35], v15 offset:{L_S}
    ds_read_b128 v[36:39], v15 offset:{L_S+16}
    s_waitcnt lgkmcnt(0)
    v_max3_f32 v13, v32, v33, v34
    v_max3_f32 v14, v35, v36, v37
    v_max3_f32 v13, v13, v38, v39
    v_max_f32 v13, v13, v14
    """)
    half_reduce("v_max_f32", "v13", "v14")
    a("v_mul_f32 v14, s41, v13")
    for i in range(8):
        a(f"v_fma_f32 v{32+i}, v{32+i}, s41, -v14")
    for i in range(8):
        a(f"v_exp_f32 v{32+i}, v{32+i}")
    for i in range(4):
        a(f"v_cvt_pk_bf16_f32 v{40+i}, v{32+2*i}, v{33+2*i}")
    a(f"""
    ds_write_b128 v31, v[40:43] offset:{L_P}
    v_mov_b32 v15, 1
    ds_write_b32 v2, v15 offset:{L_FP}
    v_add_f32 v32, v32, v33
    v_add_f32 v34, v34, v35
    v_add_f32 v36, v36, v37
    v_add_f32 v38, v38, v39
    v_add_f32 v32, v32, v34
    v_add_f32 v36, v36, v38
    v_add_f32 v14, v32, v36
    """)
    half_reduce("v_add_f32", "v14", "v15")
    a(f"""
    v_perm_b32 v44, v12, v12, 0
    v_mov_b32 v45, v13
    v_mov_b32 v46, v44
    v_mov_b32 v47, v14
    s_mov_b32 exec_lo, 1
    s_mov_b32 exec_hi, 1
    """)
    store2("global_store_dwordx4 v11, v[44:47], s[30:31]")
    a("s_mov_b64 exec, -1")
    stamp(3)
    a(f"""
    L_Pgo:
    s_setprio 2
    s_mov_b32 s40, 0
    L_Ploop:
    ds_read_b128 v[24:27], v29 offset:{L_P}
    v_add_u32 v29, 64, v29
    s_cmp_ge_i32 s40, s62
    s_cbranch_scc1 L_Pv_done
    """)
    spin("L_Pv", L_PROG, "ge_i32", "s62", sleep=0)
    a(f"""
    ds_read_b64_tr_b16 v[32:33], v30
    ds_read_b64_tr_b16 v[34:35], v30 offset:1024
    ds_read_b64_tr_b16 v[36:37], v28
    ds_read_b64_tr_b16 v[38:39], v28 offset:1024
    v_add_u32 v30, 0x2000, v30
    v_add_u32 v28, 0x2000, v28
    s_add_u32 s62, s62, 8
    s_waitcnt lgkmcnt(2)
    {MFMA} v[16:19], v[32:35], v[24:27], v[16:19]
    s_waitcnt lgkmcnt(0)
    {MFMA} v[20:23], v[36:39], v[24:27], v[20:23]
    s_sub_u32 s49, s49, 1
    s_cbranch_scc0 L_Ploop
    """)
    stamp(4)
    a("""
    s_mov_b32 exec_lo, 0x000f000f
    s_mov_b32 exec_hi, 0x000f000f
    v_mov_b32 v3, 1
    """)
    for r in range(4):
        a(f"v_cndmask_b32 v{16+r}, v{16+r}, v{20+r}, s[86:87]")
    for r in (0, 2):
        a(f"v_and_or_b32 v{16+r}, v{16+r}, s46, v12")
    store2("global_store_dwordx4 v10, v[16:19], s[30:31]")
    a(f"""
    s_mov_b64 exec, 1
    ds_add_u32 v2, v3 offset:{L_PUB}
    s_mov_b64 exec, -1
    """)
    stamp(5)
    a("""
    s_cmp_eq_u32 s44, 0
    s_cbranch_scc1 L_fin
    """)

    a(f"""
    L_L2:
    s_sub_u32 s44, s44, 1
    s_lshr_b32 s95, s97, 2
    s_sub_u32 s95, s95, 1
    v_lshrrev_b32 v8, 4, v0
    v_mul_u32_u24 v1, 3072, v8
    v_and_b32 v9, 12, v0
    v_lshl_add_u32 v1, v9, 5, v1
    v_and_b32 v9, 3, v0
    v_lshl_add_u32 v1, v9, 3, v1
    s_lshl_b32 s45, s44, 10
    s_add_u32 s45, s45, {L_K}
    v_add_u32 v1, s45, v1
    s_mul_i32 s45, s95, 12288
    v_add_u32 v14, s45, v1
    """)
    if swz:
        a("v_and_b32 v9, 24, v0")
        a("v_lshlrev_b32 v9, 2, v9")
        for G_ in range(4):
            a(f"v_xor_b32 v10, {32*G_}, v9")
            a(f"v_add_u32 v{20+G_}, v10, v1")
            a(f"v_add_u32 v{24+G_}, v10, v14")
    a(f"""
    v_lshlrev_b32 v30, 4, v8
    s_lshl_b32 s45, s95, 6
    v_add_u32 v31, s45, v30
    s_mul_i32 s47, s93, 3
    s_add_u32 s47, s47, s44
    s_lshl_b32 s47, s47, {2 if pad else 1}
    {"v_bfe_u32 v8, v0, 2, 2" if pad else "v_bfe_u32 v8, v0, 3, 1"}
    v_add_u32 v8, s47, v8
    v_and_b32 v10, 7, v8
    v_cmp_eq_u32 s[84:85], s32, v10
    v_lshlrev_b32 v8, 14, v8
    v_and_b32 v9, {3 if pad else 7}, v0
    v_lshl_add_u32 v8, v9, 4, v8
    s_lshl3_add_u32 s38, s92, s94
    s_lshl3_add_u32 s38, s38, s32
    s_lshl_b32 s38, s38, 7
    s_add_u32 s38, s38, {WS_FP}
    v_add_u32 v13, s38, v8
    s_cmp_lg_u32 s82, 0
    s_cselect_b32 s84, s84, 0
    {'' if finlocal else 's_mov_b32 s84, 0'}
    s_and_b32 s84, s84, 0xffff
    s_xor_b32 s85, s84, 0xffff
    s_add_u32 s47, s81, 12
    """)
    BREG = lambda sl, G_: 40 + 16 * sl + 4 * G_
    AREG = lambda sl: 168 + 4 * sl
    DREG = lambda G_: 140 + 4 * G_
    def rd(sl):
        base, off = ("v14", 0) if sl == 0 else ("v1", 12288 * (sl - 1))
        for G_ in range(4):
            for hf in range(2):
                r = BREG(sl, G_) + 2 * hf
                if swz:
                    a(f"ds_read_b64_tr_b16 v[{r}:{r+1}], v{(24 if sl == 0 else 20)+G_} offset:{off + 512*hf}")
                else:
                    a(f"ds_read_b64_tr_b16 v[{r}:{r+1}], {base} offset:{off + 32*G_ + 512*hf}")
    def mm(sl, first=False):
        for G_ in range(4):
            c = "0" if first else f"v[{DREG(G_)}:{DREG(G_)+3}]"
            a(f"{MFMA} v[{DREG(G_)}:{DREG(G_)+3}], v[{AREG(sl)}:{AREG(sl)+3}], v[{BREG(sl,G_)}:{BREG(sl,G_)+3}], {c}")
    vecrd = "\n".join([f"ds_read_b128 v[{AREG(0)}:{AREG(0)+3}], v31 offset:{L_VEC}"] +
                      [f"ds_read_b128 v[{AREG(sl)}:{AREG(sl)+3}], v30 offset:{L_VEC+64*(sl-1)}" for sl in range(1, 3 if light else 5)])
    for sl in range(1, 5):
        if sl >= 3:
            a(f"s_cmp_lt_u32 s95, {sl}")
            a("s_cbranch_scc1 L_2r")
        spin(f"L_2a{sl}", L_PROG, "ge_i32", "s47")
        rd(sl)
        a("s_add_u32 s47, s47, 12")
    a("L_2r:")
    stamp(3)
    a(f"""
    s_mov_b32 s49, 0
    s_mov_b32 s50, 0x400000
    L_2b:
    ds_read_b32 v3, v2 offset:{L_FV}
    {vecrd}
    ds_read_b32 v29, v2 offset:{L_PROG}
    s_waitcnt lgkmcnt(0)
    v_readfirstlane_b32 s40, v3
    v_readfirstlane_b32 s41, v29
    s_cmp_lg_u32 s40, 0
    s_cbranch_scc1 L_2v_done
    s_cmp_ge_i32 s41, s47
    s_cbranch_scc1 L_2b_done
    s_sub_u32 s50, s50, 1
    s_cbranch_scc0 L_2b
    s_endpgm
    L_2b_done:
    s_mov_b32 s49, 1
    """)
    stamp(4)
    rd(0)
    spin("L_2v", L_FV, "lg_u32", 0, sleep=0, extra=vecrd)
    stamp(5)
    if light:
        for sl in (3, 4):
            a(f"ds_read_b128 v[{AREG(sl)}:{AREG(sl)+3}], v30 offset:{L_VEC+64*(sl-1)}")
    mm(1, first=True); mm(2)
    a("s_cmp_lt_u32 s95, 3")
    a("s_cbranch_scc1 L_2m")
    if light: a("s_waitcnt lgkmcnt(0)")
    mm(3)
    a("s_cmp_lt_u32 s95, 4")
    a("s_cbranch_scc1 L_2m")
    mm(4)
    a("""
    L_2m:
    s_cmp_lg_u32 s49, 0
    s_cbranch_scc1 L_2last
    """)
    spin("L_2c", L_PROG, "ge_i32", "s47", sleep=0)
    stamp(4)
    rd(0)
    a("L_2last:")
    for G_ in range(4):
        a(f"s_waitcnt lgkmcnt({6-2*G_})")
        a(f"{MFMA} v[{DREG(G_)}:{DREG(G_)+3}], v[{AREG(0)}:{AREG(0)+3}], v[{BREG(0,G_)}:{BREG(0,G_)+3}], v[{DREG(G_)}:{DREG(G_)+3}]")
    a(f"""
    s_mov_b32 exec_hi, 0
    v_and_or_b32 v16, v{DREG(0)}, s46, v12
    v_mov_b32 v17, v{DREG(1)}
    v_and_or_b32 v18, v{DREG(2)}, s46, v12
    v_mov_b32 v19, v{DREG(3)}
    s_mov_b32 exec_lo, s85
    global_store_dwordx4 v13, v[16:19], s[30:31] sc1
    s_mov_b32 exec_lo, s84
    s_cbranch_execz L_pub3
    global_store_dwordx4 v13, v[16:19], s[30:31]
    L_pub3:
    """)
    stamp(6)
    a("L_fin:")
    finish()

    a(f"""
    L_L1:
    s_cmp_ge_u32 s33, 27
    s_cbranch_scc1 L_R
    s_mul_i32 s38, s33, 57
    s_lshr_b32 s38, s38, 9
    s_mul_i32 s39, s38, 9
    s_sub_u32 s39, s33, s39
    v_lshrrev_b32 v8, 3, v0
    v_and_b32 v9, 3, v0
    v_lshl_add_u32 v8, v9, 3, v8
    v_lshlrev_b32 v8, 1, v8
    s_lshl_b32 s45, s39, 7
    v_add_u32 v8, s45, v8
    s_waitcnt lgkmcnt(0)
    global_load_ushort v28, v8, s[4:5]
    global_load_ushort v29, v8, s[4:5] offset:64
    """)
    masks()
    a(f"""
    s_mul_i32 s45, s32, 20736
    s_mul_i32 s47, s39, 2304
    s_add_u32 s45, s45, s47
    s_mul_i32 s47, s38, 768
    s_add_u32 s45, s45, s47
    s_add_u32 s45, s45, {WS_HP}
    v_bfe_u32 v8, v0, 4, 2
    v_and_b32 v10, 8, v0
    v_lshrrev_b32 v10, 1, v10
    v_add_u32 v8, v8, v10
    v_lshlrev_b32 v8, 7, v8
    v_and_b32 v9, 7, v0
    v_lshl_add_u32 v8, v9, 4, v8
    v_add_u32 v13, s45, v8
    v_lshlrev_b32 v1, 4, v0
    v_add_u32 v1, {L_W}, v1
    """)
    for i in range(12):
        a(f"v_mov_b32 v{16+i}, 0")
    a("""
    s_waitcnt vmcnt(0)
    v_lshl_or_b32 v28, v28, 16, v28
    v_lshl_or_b32 v29, v29, 16, v29
    s_movk_i32 s49, 1
    """)
    spin("L_1t", L_TAU, "lg_u32", 0)
    tau_from("s40")
    spin("L_1w", L_PROG, "ge_i32", 42)
    stamp(1)
    a("L_1loop:")
    for n in range(12):
        a(f"ds_read_b128 v[{32+4*n}:{35+4*n}], v1 offset:{1024*n}")
    for rg in range(4):
        for d in range(4):
            a(f"v_and_b32_dpp v{92+4*rg+d}, v28, v{4+d} quad_perm:[{rg},{rg},{rg},{rg}] {DPPF}")
        a(f"s_waitcnt lgkmcnt({9-3*rg})")
        for k in range(3):
            a(f"{MFMA} v[{16+4*k}:{19+4*k}], v[{92+4*rg}:{95+4*rg}], v[{32+12*rg+4*k}:{35+12*rg+4*k}], v[{16+4*k}:{19+4*k}]")
    a(f"""
    v_mov_b32 v28, v29
    v_add_u32 v1, {12*1024}, v1
    s_sub_u32 s49, s49, 1
    s_cbranch_scc0 L_1loop
    """)
    stamp(2)
    for r in range(4):
        a(f"v_permlane32_swap_b32 v{16+r}, v{20+r}")
    for r in range(4):
        a(f"v_mov_b32 v{8+r}, v{24+r}")
    for r in range(4):
        a(f"v_add_f32_dpp v{16+r}, v{20+r}, v{16+r} row_ror:8 {DPPF}")
    for r in range(4):
        a(f"v_permlane32_swap_b32 v{8+r}, v{24+r}")
    for r in range(4):
        a(f"v_add_f32_dpp v{16+r}, v{8+r}, v{24+r} row_ror:8 row_mask:0xf bank_mask:0xc")
    for r in (0, 2):
        a(f"v_and_or_b32 v{16+r}, v{16+r}, s46, v12")
    a("s_mov_b32 exec_hi, 0x00ff00ff")
    store2("global_store_dwordx4 v13, v[16:19], s[30:31]")
    a("s_mov_b32 exec_hi, -1")
    stamp(6)

    parts = 8 // G
    lg = {1: 0, 2: 1, 4: 2, 8: 3}
    a(f"""
    L_R:
    s_sub_u32 s38, 31, s33
    """)
    if pad:
        a("""
        s_lshl3_add_u32 s62, s38, s32
        s_and_b32 s39, s62, 1
        s_lshr_b32 s36, s62, 1
        """)
    else:
        a(f"""
        s_and_b32 s39, s38, {parts-1}
        s_lshr_b32 s36, s38, {lg[parts]}
        s_lshl3_add_u32 s36, s36, s32
        """)
    a(f"""
    s_cmp_ge_u32 s36, 18
    s_cbranch_scc1 L_fin
    s_lshr_b32 s37, s36, 1
    s_lshl_b32 s37, s37, 6
    s_and_b32 s38, s36, 1
    s_lshl3_add_u32 s37, s38, s37
    s_lshl_b32 s45, s39, {lg[G]}
    v_and_b32 v4, {G-1}, v0
    v_add_u32 v4, s45, v4
    v_and_b32 v9, 48, v0
    v_add3_u32 v8, v4, v9, s37
    v_lshlrev_b32 v8, 1, v8
    v_lshlrev_b32 v3, 2, v0
    v_mov_b32 v20, 0
    v_mov_b32 v25, 0
    s_waitcnt lgkmcnt(0)
    global_load_ushort v9, v8, s[22:23]
    """)
    for i in range(4):
        a(f"global_load_dword v{16+i}, v3, s[4:5] offset:{256*i}")
        a(f"global_load_dword v{21+i}, v3, s[24:25] offset:{256*i}")
    a(f"""
    s_mov_b32 exec_hi, 0
    global_load_dword v20, v3, s[4:5] offset:1024
    global_load_dword v25, v3, s[24:25] offset:1024
    s_mov_b32 exec_hi, -1
    s_lshl_b32 s38, {'s62' if pad else 's36'}, 14
    {'v_and_b32 v4, 3, v4' if pad else ''}
    s_add_u32 s38, s38, {WS_FP + 4096}
    v_lshrrev_b32 v1, {lg[G]}, v0
    v_lshlrev_b32 v1, 7, v1
    v_lshl_add_u32 v1, v4, 4, v1
    v_add_u32 v26, s38, v1
    v_add_u32 v27, 0x2000, v26
    v_mov_b32 v10, 0
    v_mov_b32 v11, 0x3f803f80
    s_waitcnt vmcnt(0)
    """)
    for i in range(5):
        a(f"""
        v_lshlrev_b32 v12, 16, v{16+i}
        v_and_b32 v13, 0xffff0000, v{16+i}
        v_lshlrev_b32 v14, 16, v{21+i}
        v_and_b32 v15, 0xffff0000, v{21+i}
        v_mul_f32 v12, v12, v14
        v_mul_f32 v13, v13, v15
        v_cvt_pk_bf16_f32 v12, v12, v13
        v_dot2c_f32_bf16 v10, v12, v11
        """)
    a(f"""
    v_add_f32_dpp v10, v10, v10 row_ror:1 {DPPF}
    v_add_f32_dpp v10, v10, v10 row_ror:2 {DPPF}
    v_add_f32_dpp v10, v10, v10 row_ror:4 {DPPF}
    v_add_f32_dpp v10, v10, v10 row_ror:8 {DPPF}
    v_mov_b32 v11, v10
    v_permlane16_swap_b32 v11, v10
    v_add_f32 v10, v10, v11
    v_mov_b32 v11, v10
    v_permlane32_swap_b32 v11, v10
    v_add_f32 v10, v10, v11
    v_cvt_pk_bf16_f32 v10, v10, v10
    v_and_b32 v10, 0xffff0000, v10
    v_mul_f32 v10, {f2u(-math.log2(math.e))}, v10
    v_exp_f32 v10, v10
    v_add_f32 v10, 1.0, v10
    v_rcp_f32 v10, v10
    v_cvt_pk_bf16_f32 v10, v10, v10
    v_and_b32 v5, 0xffff0000, v10
    v_sub_f32 v6, 1.0, v5
    v_cvt_pk_bf16_f32 v6, v6, v6
    v_and_b32 v6, 0xffff0000, v6
    v_lshlrev_b32 v7, 16, v9
    """)
    spin("L_Rt", L_TAU, "lg_u32", 0, vreg="v12", extra=f"ds_read_b32 v13, v2 offset:{L_ENEW}")
    PL = 64 // G
    NA = -(-40 // PL); NB = -(-48 // PL)
    def cnt(t, n): return max(0, min(PL, n - t * PL)) * G
    def m64(n): return (1 << n) - 1
    a("v_and_b32 v12, 0xff, v12")
    part = [32 + 4 * t for t in range(NA) if cnt(t, 40) < 64] + [64 + 4 * t for t in range(NB) if cnt(t, 40) < 64]
    for r in part:
        a(f"v_mov_b32 v{r+1}, 0"); a(f"v_mov_b32 v{r+3}, 0")
    tl = NB - 1
    assert all(cnt(t, 40) == 64 for t in range(tl))
    a(f"""
    s_cmp_ge_u32 s36, 12
    s_cselect_b32 s45, {cnt(tl, 40)}, {cnt(tl, 48) % 64}
    s_bfm_b64 s[52:53], s45, 0
    {"s_cselect_b64 s[52:53], s[52:53], -1" if cnt(tl, 48) == 64 else ""}
    s_or_b32 s36, s36, s39
    s_add_u32 s47, s81, {rgate}
    """)
    spin("L_Rg", L_PROG, "ge_i32", "s47")
    if sent is not None:
        a(f"""
        s_lshl_b32 s45, s32, 7
        s_add_u32 s45, s45, s38
        v_lshlrev_b32 v30, 10, v0
        v_add_u32 v30, s45, v30
        s_mov_b64 exec, 31
        """)
        pollhead("L_Rsent")
        a(f"""
        global_load_dword v31, v30, s[30:31] offset:-4096 sc1
        s_waitcnt vmcnt(0)
        v_xor_b32 v10, v31, v12
        v_and_b32 v10, 0xff, v10
        v_cmp_ne_u32 vcc, 0, v10
        s_bcnt1_i32_b64 s45, vcc
        s_cmp_gt_u32 s45, {sent}
        s_cbranch_scc1 L_Rsent
        s_mov_b64 exec, -1
        """)
    stamp(4)
    loads = []
    for t in range(NB):
        loads.append((64 + 4 * t, "v27", t, "s[52:53]" if t == tl else None))
    for t in range(NA):
        c = cnt(t, 40)
        loads.append((32 + 4 * t, "v26", t, None if c == 64 else c))
    assert rdepth == 1 or cnt(tl, 40) != 0
    if rmask:
        assert G == 4
        nl = len(loads)
        MK = lambda i: f"s[{84+2*i}:{85+2*i}]"
        for r in part:
            a(f"v_mov_b32 v{r}, 0"); a(f"v_mov_b32 v{r+2}, 0")
        for i, (r, base, t, ex) in enumerate(loads):
            if isinstance(ex, str): a(f"s_mov_b64 {MK(i)}, {ex}")
            elif ex is not None: a(f"s_bfm_b64 {MK(i)}, {ex}, 0")
            else: a(f"s_mov_b64 {MK(i)}, -1")
        a("v_mov_b32 v11, 0xff")
        a("s_mov_b32 s46, 0xffffff00")
        def rloads():
            for i, (r, base, t, ex) in enumerate(loads):
                a(f"s_mov_b64 exec, {MK(i)}")
                a(f"global_load_dwordx4 v[{r}:{r+3}], {base}, s[30:31] offset:{128*PL*t-4096} sc1")
        for d in range(rmask - 1):
            rloads()
            a(f"s_sleep {rstag}")
        pollhead("L_Rpoll")
        rloads()
        for i, (r, base, t, ex) in enumerate(loads):
            a(f"s_mov_b64 exec, {MK(i)}")
            a(f"s_waitcnt vmcnt({rmask * nl - 1 - i})")
            a(f"v_xor_b32 v10, v{r}, v12")
            a(f"v_bitop3_b32 v10, v{r+2}, v10, v12 bitop3:0xde")
            a(f"v_and_b32 v10, v11, v10")
            a(f"v_cmp_ne_u32 {MK(i)}, 0, v10")
        a("""
        s_mov_b64 exec, -1
        s_or_b64 s[54:55], s[84:85], s[86:87]
        s_or_b64 s[56:57], s[88:89], s[90:91]
        s_or_b64 s[54:55], s[54:55], s[92:93]
        s_or_b64 s[56:57], s[56:57], s[94:95]
        s_or_b64 s[54:55], s[54:55], s[56:57]
        s_cbranch_scc1 L_Rpoll
        """)
        for acc, r0 in ((96, 32), (100, 64)):
            for d in (0, 2):
                for t in range(3):
                    a(f"v_and_b32 v{108+t}, s46, v{r0+4*t+d}")
                a(f"v_add_f32 v{acc+d+1}, v{r0+d+1}, v{r0+4+d+1}")
                a(f"v_add_f32 v{acc+d}, v108, v109")
                a(f"v_add_f32 v{acc+d+1}, v{acc+d+1}, v{r0+8+d+1}")
                a(f"v_add_f32 v{acc+d}, v{acc+d}, v110")
    else:
        assert rdepth == 1 and G >= 2
        def rloads():
            for r in part:
                a(f"v_mov_b32 v{r}, v12"); a(f"v_mov_b32 v{r+2}, v12")
            for r, base, t, ex in loads:
                if isinstance(ex, str):
                    a(f"s_mov_b64 exec, {ex}")
                    if cnt(tl, 40) == 0: a("s_cbranch_execz L_Rskip")
                elif ex is not None:
                    a(f"s_bfm_b64 exec, {ex}, 0")
                a(f"global_load_dwordx4 v[{r}:{r+3}], {base}, s[30:31] offset:{128*PL*t-4096} sc1")
                if isinstance(ex, str) and cnt(tl, 40) == 0: a("L_Rskip:")
                if ex is not None: a("s_mov_b64 exec, -1")
        for d in range(rdepth - 1):
            rloads()
            a(f"s_sleep {rstag}")
        pollhead("L_Rpoll")
        rloads()
        cd = (0, 1, 2, 3)
        first = True
        nl = len(loads)
        for i, (r, base, t, ex) in enumerate(loads):
            wait = rdepth * nl - 1 - i
            if cnt(tl, 40) == 0 and i < tl: wait = max(0, wait - 1)
            a(f"s_waitcnt vmcnt({wait})")
            chk([r, r + 2], first=first); first = False
            acc = 100 if base == "v27" else 96
            n_ = NB if base == "v27" else NA
            if t == 0:
                if n_ == 1:
                    for d in range(4): a(f"v_mov_b32 v{acc+d}, v{r+d}")
                continue
            for d in range(0, 4, 2):
                f_ = (r - 4) if t == 1 else acc
                a(f"v_pk_add_f32 v[{acc+d}:{acc+d+1}], v[{f_+d}:{f_+d+1}], v[{r+d}:{r+d+1}]")
        chkend("L_Rpoll")
    stamp(3)
    for e in range(4):
        a(f"v_permlane32_swap_b32 v{96+e}, v{100+e}")
    for e in range(4):
        a(f"v_add_f32 v{104+e}, v{96+e}, v{100+e}")
    a(f"""
    v_permlane16_swap_b32 v104, v105
    v_permlane16_swap_b32 v106, v107
    v_add_f32 v104, v104, v105
    v_add_f32 v106, v106, v107
    """)
    for r in (8, 4, 2, 1):
        if r >= G:
            a(f"v_add_f32_dpp v104, v104, v104 row_ror:{r} {DPPF}")
            a(f"v_add_f32_dpp v106, v106, v106 row_ror:{r} {DPPF}")
    a(f"""
    v_permlane32_swap_b32 v104, v106
    v_cvt_pk_bf16_f32 v104, v104, v106
    v_and_b32 v106, 0xffff0000, v104
    v_lshlrev_b32 v104, 16, v104
    v_add_f32 v106, v106, v7
    v_mul_f32 v104, v104, v5
    v_cvt_pk_bf16_f32 v106, v106, v106
    v_and_b32 v106, 0xffff0000, v106
    v_mul_f32 v106, v106, v6
    v_cvt_pk_bf16_f32 v104, v104, v106
    v_and_b32 v106, 0xffff0000, v104
    v_lshlrev_b32 v104, 16, v104
    v_add_f32 v104, v104, v106
    v_cvt_pk_bf16_f32 v104, v104, v104
    s_mov_b32 exec_lo, {((1 << G) - 1) * 0x10001}
    s_mov_b32 exec_hi, {((1 << G) - 1) * 0x10001}
    global_store_short v8, v104, s[26:27]
    s_cmp_lg_u32 s36, 0
    s_cbranch_scc1 L_fin
    s_mov_b64 exec, 1
    global_store_dword v2, v13, s[30:31] sc1
    """)
    finish()
    if stamps:
        a(f"""
        L_stamp_out:
        s_memrealtime s[78:79]
        s_mov_b64 exec, 1
        s_waitcnt lgkmcnt(0)
        s_lshl_b32 s60, s2, 4
        s_add_u32 s60, s60, s3
        s_lshl_b32 s60, s60, 5
        s_add_u32 s60, s60, {WS_DBG}
        v_mov_b32 v1, s60
        """)
        for i in range(8):
            a(f"v_mov_b32 v{160+i}, s{64+2*i}")
        a("""
        global_store_dwordx4 v1, v[160:163], s[30:31]
        global_store_dwordx4 v1, v[164:167], s[30:31] offset:16
        """)
    a("L_exit:")
    a("s_endpgm")
    a.raw("L_codeend:")
    a.raw(f".fill ({CODE_PF} - (L_codeend - {KNAME})) / 4, 4, 0xbf800000")
    a.raw('.section .rodata,"a"')
    a.raw(".p2align 6")
    a.raw(f".amdhsa_kernel {KNAME}")
    a.raw("  .amdhsa_next_free_vgpr 200")
    a.raw("  .amdhsa_next_free_sgpr 100")
    a.raw("  .amdhsa_accum_offset 200")
    a.raw("  .amdhsa_group_segment_fixed_size 0")
    a.raw("  .amdhsa_kernarg_size 112")
    a.raw("  .amdhsa_user_sgpr_count 2")
    a.raw("  .amdhsa_user_sgpr_kernarg_segment_ptr 1")
    a.raw("  .amdhsa_system_sgpr_workgroup_id_x 1")
    a.raw(".end_amdhsa_kernel")
    t = a.text()
    for key, lab in (("q", "L_Qpoll"), ("h", "L_Hpoll"), ("s", "L_Spoll"), ("o", "L_Opoll")):
        i0 = t.index(lab + ":"); i1 = t.index("s_cbranch_vccnz " + lab, i0)
        body = t[i0:i1]
        if key in nop:
            body = re.sub(r"    global_load[^\n]*\n", "", body)
            t = t[:i0] + body + t[i1:].replace("s_cbranch_vccnz " + lab, "s_nop 0", 1)
        elif pol is not None:
            t = t[:i0] + body.replace(" sc1\n", pol + "\n") + t[i1:]
    return t

E = dict(G=4, npre=15, W2=30, ogate=24, early=True, W=21)
N = dict(E, sent=None, rgate=36)
N = dict(N, ogate=16)
F = dict(N, npo=18)
F = dict(F, W=22, W2=32)
V = {
    'k67': dict(F),
    'k67_q52': dict(F, qgate=52),
    'k67_q44': dict(F, qgate=44),
    'k67_s20': dict(F, sgate=20),
    'k67_q52s24': dict(F, qgate=52, sgate=24),
}
if __name__ == "__main__":
    for n, kw in V.items():
        open(f'gen/{n}.s', 'w').write(gen(**kw))
        open(f'gen/{n}_st.s', 'w').write(gen(stamps=True, **kw))
```

```python
import sys
sys.path.insert(0, 'gen')
import gen67 as g
kw = dict(g.F, qgate=52, sgate=24)
t = g.gen(**kw)
doc = """;
"""
key = '.amdgcn_target "amdgcn-amd-amdhsa--gfx950"\n'
open('final6.s', 'w').write(t.replace(key, doc + key, 1))
open('k68_st.s', 'w').write(g.gen(stamps=True, **kw))
open('k68_glob.s', 'w').write(g.gen(forcelocal=0, **kw))
```
